```python
import torch

def _softmax(x, axis=-1):
    return torch.softmax(x, dim=axis)
def _gelu(x):
    return torch.nn.functional.gelu(x, approximate="tanh")
def _silu(x):
    return torch.nn.functional.silu(x)
def _sigmoid(x):
    return torch.sigmoid(x)
def _layernorm(x, axis=-1, eps=1e-5):
    m = x.mean(dim=axis, keepdim=True)
    v = x.var(dim=axis, keepdim=True, unbiased=False)
    return (x - m) / torch.sqrt(v + eps)
def _scatter_add(tgt, idx, src, axis=0):
    return tgt.clone().index_add_(axis, idx, src)
def _segment_sum(src, seg, n):
    out = torch.zeros((n,) + src.shape[1:], dtype=src.dtype)
    return out.index_add_(0, seg, src)
def _pad(x, pw):
    flat = tuple(v for pair in reversed(pw) for v in pair)
    return torch.nn.functional.pad(x, flat)

kernel_name = 'concat_heads__ssm_conv_s4d__ssm_conv_s4__prompt'

def setup_inputs():

    _w = (lambda a: (lambda t: t.to(torch.bfloat16) if t.is_floating_point() else t)(torch.as_tensor(a)))
    def _A_setup():
        Bsz, L, D, N = 1, 2048, 640, 192
        return {
            "u": _w((lambda *s: torch.randn(*s, dtype=torch.bfloat16) * 0.05)(Bsz, L, D)),
            "log_A_real": _w((lambda *s: torch.randn(*s, dtype=torch.bfloat16) * 6.4)(D, N) * 0.5),
            "A_imag": _w((lambda *s: torch.randn(*s, dtype=torch.bfloat16) * 0.05)(D, N) * 3.14),
            "C_real": _w((lambda *s: torch.randn(*s, dtype=torch.bfloat16) * 0.05)(D, N) / N ** 0.5),
            "C_imag": _w((lambda *s: torch.randn(*s, dtype=torch.bfloat16) * 0.05)(D, N) / N ** 0.5),
            "log_dt": _w((lambda *s: torch.randn(*s, dtype=torch.bfloat16) * 0.05)(D) * 0.5 - 4.0),
            "D_skip": _w((lambda *s: torch.randn(*s, dtype=torch.bfloat16) * 0.05)(D)),
        }
    _A_in = _A_setup()

    def _B_setup():
        B, L, D, N = 1, 2048, 640, 192
        A_re = -(lambda _x: torch.exp(torch.as_tensor(_x)))((lambda *s: torch.randn(*s, dtype=torch.bfloat16) * 6.4)(D, N))
        A_im = torch.pi * (lambda *s: torch.randn(*s, dtype=torch.bfloat16) * 0.05)(D, N)
        B_re = (lambda *s: torch.randn(*s, dtype=torch.bfloat16) * 0.05)(D, N)
        B_im = (lambda *s: torch.randn(*s, dtype=torch.bfloat16) * 0.05)(D, N)
        C_re = (lambda *s: torch.randn(*s, dtype=torch.bfloat16) * 0.05)(D, N)
        C_im = (lambda *s: torch.randn(*s, dtype=torch.bfloat16) * 0.05)(D, N)
        log_dt = (lambda *s: torch.randn(*s, dtype=torch.bfloat16) * 0.05)(D) * 0.5 - 4.0
        Dskip = (lambda *s: torch.randn(*s, dtype=torch.bfloat16) * 0.05)(D)
        return {
            "u": _w((lambda *s: torch.randn(*s, dtype=torch.bfloat16) * 0.05)(B, L, D)),
            "A_re": _w(A_re),
            "A_im": _w(A_im),
            "B_re": _w(B_re),
            "B_im": _w(B_im),
            "C_re": _w(C_re),
            "C_im": _w(C_im),
            "log_dt": _w(log_dt),
            "Dskip": _w(Dskip),
        }
    _B_in = _B_setup()

    return {
        "A_u": _A_in["u"],
        "A_log_A_real": _A_in["log_A_real"],
        "A_A_imag": _A_in["A_imag"],
        "A_C_real": _A_in["C_real"],
        "A_C_imag": _A_in["C_imag"],
        "A_log_dt": _A_in["log_dt"],
        "A_D_skip": _A_in["D_skip"],
        "B_u": _B_in["u"],
        "B_A_re": _B_in["A_re"],
        "B_A_im": _B_in["A_im"],
        "B_B_re": _B_in["B_re"],
        "B_B_im": _B_in["B_im"],
        "B_C_re": _B_in["C_re"],
        "B_C_im": _B_in["C_im"],
        "B_log_dt": _B_in["log_dt"],
        "B_Dskip": _B_in["Dskip"],
    }

def reference(A_u, A_log_A_real, A_A_imag, A_C_real, A_C_imag, A_log_dt, A_D_skip, B_u, B_A_re, B_A_im, B_B_re, B_B_im, B_C_re, B_C_im, B_log_dt, B_Dskip):
    def _A_ref(u, log_A_real, A_imag, C_real, C_imag, log_dt, D_skip):
        L = u.shape[1]
        dt = torch.exp(log_dt)
        A = -torch.exp(log_A_real) + 1j * A_imag
        C = (C_real + 1j * C_imag) * dt[:, None]
        pos = (lambda x, dt: x.to(dt))(torch.arange(L), log_dt.dtype)
        P = torch.exp((A * dt[:, None])[:, :, None] * pos[None, None, :])
        K = 2.0 * torch.einsum("dn,dnl->dl", C, P).real
        L2 = 2 * L
        u_t = (lambda x, *d: x.permute(*d))(u, 0, 2, 1)
        Kf = (lambda x, *a, **k: torch.fft.rfft(x.float(), *a, **k))(K, L2)
        Uf = (lambda x, *a, **k: torch.fft.rfft(x.float(), *a, **k))(u_t, L2)
        y = (lambda x, *a, **k: torch.fft.irfft(x, *a, **k).to(torch.bfloat16))(Uf * Kf[None, :, :], L2)[:, :, :L]
        y = (lambda x, *d: x.permute(*d))(y, 0, 2, 1)
        return y + u * D_skip[None, None, :]

    def _B_ref(u, A_re, A_im, B_re, B_im, C_re, C_im, log_dt, Dskip):
        Bsz, L, D = u.shape
        dt = torch.exp(log_dt)[:, None]
        A = A_re + 1j * A_im
        Bc = B_re + 1j * B_im
        Cc = C_re + 1j * C_im
        logdA = dt * A
        dB = dt * Bc
        l = (lambda x, dt: x.to(dt))(torch.arange(L), A_re.dtype)
        P = torch.exp(logdA[:, :, None] * l[None, None, :])
        K = torch.einsum("dn,dnl,dn->dl", Cc, P, dB).real
        L2 = 2 * L
        Kp = _pad(K, ((0, 0), (0, L)))
        up = (lambda x, *d: x.permute(*d))(u, 0, 2, 1)
        up = _pad(up, ((0, 0), (0, 0), (0, L)))
        Kf = (lambda x, axes=(-2,-1): torch.fft.rfft2(x.float(), dim=axes))(Kp[:, None, :], axes=(-2, -1))
        Uf = (lambda x, axes=(-2,-1): torch.fft.rfft2(x.float(), dim=axes))(up[:, :, None, :], axes=(-2, -1))
        Yf = Uf * Kf[None, :, :, :]
        y = (lambda x, s, axes=(-2,-1): torch.fft.irfft2(x, s=s, dim=axes).to(torch.bfloat16))(Yf, (1, L2), axes=(-2, -1))[:, :, 0, :L]
        y = (lambda x, *d: x.permute(*d))(y, 0, 2, 1) + u * Dskip[None, None, :]
        return y

    a = _A_ref(A_u, A_log_A_real, A_A_imag, A_C_real, A_C_imag, A_log_dt, A_D_skip)
    b = _B_ref(B_u, B_A_re, B_A_im, B_B_re, B_B_im, B_C_re, B_C_im, B_log_dt, B_Dskip)
    return torch.concatenate([a, b], axis=-1)
```

```python
import re
TRANS = ("v_exp_f32", "v_log_f32", "v_rcp_f32", "v_rsq_f32", "v_sqrt_f32", "v_sin_f32", "v_cos_f32")
REG = re.compile(r"\b([vsa])(\d+)\b|\b([vsa])\[(\d+):(\d+)\]|\b(vcc|exec|m0|scc)\b")

def regs(tok):
    out = set()
    for m in REG.finditer(tok):
        if m.group(1): out.add((m.group(1), int(m.group(2))))
        elif m.group(3):
            for i in range(int(m.group(4)), int(m.group(5)) + 1): out.add((m.group(3), i))
        else: out.add((m.group(6), 0))
    return out

class Ins:
    def __init__(self, text):
        self.text = text
        t = text.split(";")[0].strip()
        self.label = t.endswith(":") or t.startswith(".") or t == ""
        if self.label:
            self.op = ""; self.w = set(); self.r = set(); self.kind = "label"; return
        parts = t.split(None, 1)
        self.op = op = parts[0]
        rest = parts[1] if len(parts) > 1 else ""
        ops = []; cur = ""; d = 0
        for ch in rest:
            if ch == "[": d += 1
            if ch == "]": d -= 1
            if ch == "," and d == 0: ops.append(cur.strip()); cur = ""
            else: cur += ch
        if cur.strip(): ops.append(cur.strip())
        if ops:
            last = ops[-1].split()
            ops[-1] = last[0]
            self.mods = " ".join(last[1:])
        else: self.mods = ""
        self.ops = ops
        R = [regs(o) for o in ops]
        U = lambda xs: set().union(*xs) if xs else set()
        self.passes = 0
        if op.startswith("v_mfma"):
            self.kind = "mfma"; self.w = R[0]; self.r = U(R[1:]); self.ab = R[1] | R[2]; self.c = R[3]
            self.passes = 8 if "32x32x16" in op else 4
        elif op.startswith("v_"):
            self.kind = "valu"; self.w = R[0]; self.r = U(R[1:])
            if op.startswith(("v_fmac", "v_pk_fmac", "v_writelane")) or "dpp" in op or "sdwa" in op: self.r |= R[0]
            if op.startswith("v_cndmask") and len(ops) == 3: self.r.add(("vcc", 0))
            if op.startswith("v_permlane"): self.w = R[0] | R[1]; self.r = R[0] | R[1]
        elif op.startswith("ds_"):
            self.kind = "ds"
            if op.startswith(("ds_read", "ds_bpermute", "ds_swizzle")) or "rtn" in op: self.w = R[0]; self.r = U(R[1:])
            else: self.w = set(); self.r = U(R)
            if "addtid" in op: self.r.add(("m0", 0))
        elif op.startswith(("buffer_", "global_")):
            self.kind = "vmem"
            if "load" in op: self.w = R[0]; self.r = U(R[1:])
            else: self.w = set(); self.r = U(R)
        elif op.startswith("s_"):
            self.kind = "salu"
            if op.startswith(("s_cmp", "s_waitcnt", "s_nop", "s_barrier", "s_cbranch", "s_branch", "s_endpgm", "s_setprio", "s_sleep", "s_bitcmp")): self.w = set(); self.r = U(R)
            else: self.w = R[0] if R else set(); self.r = U(R[1:])
        else:
            raise ValueError(text)
        self.trans = op.replace("_e64", "").replace("_e32", "") in TRANS
        self.pk = op.startswith("v_pk_") or "sdwa" in op or op.startswith("v_fma_mix")
        self.dpp = "dpp" in op
        self.states = 1
        if op == "s_nop": self.states = int(ops[0], 0) + 1

def need(p, c):
    n = 0
    vw = {x for x in p.w if x[0] in "va"}
    sw = {x for x in p.w if x[0] in ("s", "vcc")}
    if p.kind == "valu":
        if vw & c.r:
            if p.trans and not (c.kind == "valu" and c.trans): n = max(n, 1)
            if p.pk and c.kind == "valu": n = max(n, 1)
            if c.kind == "mfma": n = max(n, 2)
            if c.kind == "valu" and c.dpp: n = max(n, 2)
            if c.op.startswith(("v_readlane", "v_readfirstlane")): n = max(n, 1)
            if c.op.startswith("v_permlane"): n = max(n, 2)
        if p.pk and c.kind == "valu" and (vw & c.w): n = max(n, 1)
        if sw & c.r:
            if c.kind == "valu": n = max(n, 4 if c.op.startswith(("v_readlane", "v_writelane")) else 2)
            if c.kind == "vmem": n = max(n, 5)
            if c.kind == "salu": n = max(n, 1)
    if p.kind == "mfma":
        big = {4: 8, 8: 12}[p.passes]
        if c.kind == "mfma":
            if p.w & c.ab: n = max(n, big)
            if p.w & c.c and not (p.w == c.c and p.passes == c.passes): n = max(n, big - 2)
            if (p.w & c.w) and not (p.w == c.c): n = max(n, big)
        elif c.kind in ("valu", "ds", "vmem"):
            if p.w & (c.r | c.w): n = max(n, big)
            if c.kind == "valu" and (p.c & c.w): n = max(n, p.passes - 1)
    if p.kind == "salu" and ("m0", 0) in p.w and ("m0", 0) in c.r: n = max(n, 1)
    if p.kind == "vmem" and "store" in p.op and ("x4" in p.op or "x3" in p.op):
        if regs(p.ops[0] if p.op.startswith("buffer") else p.ops[1]) & c.w: n = max(n, 2)
    return n

def fix_hazards(lines):
    out = []
    nn = 0
    for text in lines:
        c = Ins(text)
        if c.kind != "label":
            req = 0; dist = 0
            for p in reversed(out):
                if p.kind == "label": continue
                k = need(p, c)
                if k > dist: req = max(req, k - dist)
                dist += p.states
                if dist > 20: break
            if req > 0:
                out.append(Ins(f"s_nop {req-1}")); nn += 1
        out.append(c)
    return [("" if i.kind == "label" and i.text.endswith(":") else "    ") + i.text for i in out], nn

def merge(*streams):
    streams = [s for s in streams if s]
    pos = [0] * len(streams)
    out = []
    tot = sum(len(s) for s in streams)
    for _ in range(tot):
        best = min((i for i in range(len(streams)) if pos[i] < len(streams[i])), key=lambda i: (pos[i] + 0.5) / len(streams[i]))
        out.append(streams[best][pos[best]]); pos[best] += 1
    return out
```

```python
import sys, re
from asmlib import *
NAME = "concat_heads__ssm_conv_s4d__ssm_conv_s4__prompt"
STAMP = "--stamp" in sys.argv
SWS = 14912; ROW = 272; U0 = 8 * SWS; UST = 4576; LDS = U0 + 8 * UST
KO = 1216; SE = 2368; SO = 832; YB = 4096
ELY = [0,1,2,3,262,264, 260,1032,1288,1544,776,258,516,772,520,1800, 4,5,6,7,8,256]
HI0 = list(range(9)) + [516, 772, 520, 776] + [776] * 3
HI1 = [256 + x for x in [0,0,2,4,4,4,6,8,8]] + [1032,1288,1544,1800] + [1800] * 3
SLOT = [ELY.index((HI1 if (r >> 2) & 1 else HI0)[(r & 3) + 4 * (r >> 3)]) for r in range(32)]

BND = {(12,1): 200, (8,2): 204, (8,3): 208, (8,4): 212}; ASP = 216
vU, vKd, vKd2, vKs, vYW, vTR, vO, vZ, vS1, vS2, vDW, vXr, vYr, vUW, vUL, vP, vDv, vF = range(220, 238)
vQ = 241; vZ1 = 242
TRD = 244; YC = 248
def v4(r): return f"v[{r}:{r+3}]"
def v2(r): return f"v[{r}:{r+1}]"
PRM = lambda a, p: 2 + 3 * a + p
AR = lambda p: 22 + p
AI = lambda p: 25 + p
CR = lambda p: 28 + p
CI = lambda p: 31 + p
UD = 36; KA = 52; XF = 68; YF = 100; XK = 132

c = []
e = c.append
nstamp = [0]
def stamp():
    if STAMP:
        k = nstamp[0]; nstamp[0] += 1
        e(f"s_memtime s[{70+2*k}:{71+2*k}]")
        e("s_waitcnt lgkmcnt(0)")

e("s_cmp_ge_u32 s2, 160")
e("s_cbranch_scc1 L_end")
if STAMP:
    e("s_memtime s[70:71]"); nstamp[0] = 1
e("s_and_b32 s3, s2, 7")
e("s_mul_i32 s3, s3, 20")
e("s_lshr_b32 s4, s2, 3")
e("s_add_u32 s3, s3, s4")
e("s_cmp_ge_u32 s3, 80")
e("s_cselect_b32 s5, 56, 0")
e("s_cselect_b32 s6, 80, 0")
e("s_load_dwordx16 s[16:31], s[0:1], s5")
e("s_load_dwordx4 s[32:35], s[0:1], 120")
if STAMP: e("s_load_dwordx2 s[66:67], s[0:1], 144")
e("s_sub_u32 s4, s3, s6")
e("v_lshrrev_b32 v2, 6, v0")
e("v_and_b32 v1, 63, v0")
e("v_readfirstlane_b32 s8, v2")
e("s_lshl_b32 s11, s4, 3")
e("s_add_u32 s11, s11, s8")
e("s_mul_i32 s12, s11, 384")
e("s_lshl_b32 s13, s11, 1")
e(f"v_lshl_add_u32 v{vP}, v1, 1, s12")
e(f"v_mov_b32 v{vQ}, s13")
e("s_add_u32 s10, s8, s3")
e("s_and_b32 s10, s10, 7")
e("s_mul_i32 s12, s10, %d" % (256 * 1280))
e("s_lshl_b32 s13, s4, 4")
e("s_add_u32 s12, s12, s13")
e(f"v_mul_u32_u24 v{vUL}, 5120, v1")
e(f"v_add_u32 v{vUL}, s12, v{vUL}")
for r in range(2, 22): e(f"v_mov_b32 v{r}, 0")
e("s_mul_i32 s9, s8, %d" % SWS)
e("s_mov_b32 s38, %d" % (2048 * 1280))
e("s_mov_b32 s39, 0x20000")
e("s_mov_b32 s42, %d" % (2048 * 2560))
e("s_mov_b32 s43, 0x20000")
e("s_cmp_lg_u32 s5, 0")
e("s_waitcnt lgkmcnt(0)")
e("s_cbranch_scc1 L_ldB")
e(f"global_load_short_d16_hi v20, v{vQ}, s[26:27]")
for p in range(3):
    for a in range(4): e(f"global_load_short_d16_hi v{PRM(a,p)}, v{vP}, s[{18+2*a}:{19+2*a}] offset:{128*p}")
e(f"global_load_short_d16_hi v21, v{vQ}, s[28:29]")
e("s_branch L_ldE")
e("L_ldB:")
e(f"global_load_short_d16_hi v20, v{vQ}, s[30:31]")
for p in range(3):
    for a in range(6): e(f"global_load_short_d16_hi v{PRM(a,p)}, v{vP}, s[{18+2*a}:{19+2*a}] offset:{128*p}")
e(f"global_load_short_d16_hi v21, v{vQ}, s[32:33]")
e("L_ldE:")
e("s_mov_b32 s36, s16"); e("s_mov_b32 s37, s17")
e("s_mov_b32 s40, s34"); e("s_mov_b32 s41, s35")
def uloads():
    for i in range(4): e(f"buffer_load_dwordx4 {v4(UD+4*i)}, v{vUL}, s[36:39], 0 offen offset:{1280*i}")
e("s_cmp_lg_u32 s8, 0")
e("s_cbranch_scc1 L_nou")
uloads()
e("L_nou:")
e("s_mov_b32 m0, s9")
e("s_mov_b32 s44, 0x41000000")
e("s_mov_b32 s45, 0x43800000")
e("s_mov_b32 s46, 0x3fb8aa3b")
e("s_mov_b32 s47, 0xffff0000")
T = 140
e(f"v_and_b32 v{T}, 15, v1")
e(f"v_lshrrev_b32 v{T+1}, 4, v1")
e(f"v_and_b32 v{T+2}, 31, v1")
e(f"v_lshrrev_b32 v{T+3}, 5, v1")
e(f"v_mov_b32 v{XK}, 0x3c00")
e(f"ds_write_addtid_b32 v{XK} offset:0")
e("s_mul_i32 s12, s8, %d" % UST)
e("s_add_u32 s12, s12, %d" % U0)
e(f"v_lshl_add_u32 v{T+4}, v1, 3, s12")
e(f"v_mov_b32 v{T+6}, 0"); e(f"v_mov_b32 v{T+7}, 0")
e("s_mov_b32 exec_hi, 0x0fffffff")
e(f"ds_write_b64 v{T+4}, {v2(T+6)}")
e("s_mov_b32 exec_hi, -1")
e(f"v_lshl_add_u32 v{vU}, v{T}, 5, s12")
e(f"v_lshl_add_u32 v{vU}, v{T+1}, 4, v{vU}")
e("s_lshl_b32 s12, s10, 9")
e("s_add_u32 s12, s12, %d" % (U0 + 480))
e(f"v_lshl_add_u32 v{vUW}, v1, 3, s12")
e(f"v_mul_u32_u24 v{vXr}, {ROW}, v{T+2}")
e(f"v_lshl_add_u32 v{T+4}, v{T+3}, 4, s9")
e(f"v_add_u32 v{vXr}, v{vXr}, v{T+4}")
def nib(lo): return sum((SLOT[lo + k] & 15) << (4 * k) for k in range(8))
hib = sum(((SLOT[k] >> 4) & 1) << k for k in range(32))
e(f"v_mov_b32 v{T+8}, 0x{nib(0):08x}"); e(f"v_mov_b32 v{T+9}, 0x{nib(8):08x}")
e(f"v_mov_b32 v{T+10}, 0x{nib(16):08x}"); e(f"v_mov_b32 v{T+11}, 0x{nib(24):08x}")
e(f"v_cmp_lt_u32 vcc, 15, v{T+2}")
e(f"v_cndmask_b32 v{T+8}, v{T+8}, v{T+10}, vcc")
e(f"v_cndmask_b32 v{T+9}, v{T+9}, v{T+11}, vcc")
e(f"v_lshlrev_b32 v{T+10}, 2, v{T}")
e(f"v_lshrrev_b64 {v2(T+8)}, v{T+10}, {v2(T+8)}")
e(f"v_and_b32 v{T+8}, 15, v{T+8}")
e(f"v_mov_b32 v{T+9}, 0x{hib:08x}")
e(f"v_bfe_u32 v{T+9}, v{T+9}, v{T+2}, 1")
e(f"v_lshl_or_b32 v{T+8}, v{T+9}, 4, v{T+8}")
e(f"v_add_u32 v{T+8}, 32, v{T+8}")
e(f"v_mul_u32_u24 v{vYr}, {ROW}, v{T+8}")
e(f"v_add_u32 v{vYr}, v{vYr}, v{T+4}")
e(f"v_and_b32 v{T+8}, 1, v{T}")
e(f"v_add_u32 v{T+9}, v{T}, v{T+8}")
e(f"v_sub_u32 v{T+9}, 16, v{T+9}")
e(f"v_lshl_add_u32 v{T+9}, v{T+9}, 1, s9")
e(f"v_xor_b32 v{T+8}, 1, v{T+8}")
e(f"v_mul_u32_u24 v{T+10}, {KO}, v{T+8}")
e(f"v_lshl_add_u32 v{vKd}, v{T+1}, 4, v{T+9}")
e(f"v_add_u32 v{vKd}, v{vKd}, v{T+10}")
e(f"v_add_u32 v{vKd2}, 512, v{vKd}")
e(f"v_mul_u32_u24 v{T+10}, {SO}, v{T+8}")
e(f"v_lshl_add_u32 v{vKs}, v{T+1}, 3, v{T+9}")
e(f"v_add_u32 v{vKs}, v{vKs}, v{T+10}")
e(f"v_add_u32 v{vKs}, {SE}, v{vKs}")
e(f"s_add_u32 s12, s9, {YB}")
e(f"v_lshl_add_u32 v{vYW}, v1, 3, s12")
e(f"v_lshlrev_b32 v{T+8}, 4, v1")
e("s_add_u32 s12, s9, 1072")
e(f"v_sub_u32 v{vDW}, s12, v{T+8}")
e("s_add_u32 s12, s9, 3008")
e(f"v_add_u32 v{vZ1}, s12, v{T+8}")
e(f"v_add_u32 v{vZ}, 2304, v{T+8}")
e(f"v_add_u32 v{T+9}, {1088-16*44}, v{T+8}")
e(f"v_cmp_lt_u32 vcc, 43, v1")
e(f"v_cndmask_b32 v{vZ}, v{vZ}, v{T+9}, vcc")
e(f"v_and_b32 v{T+9}, 48, v{T+8}")
e(f"v_cmp_lt_u32 vcc, 55, v1")
e(f"v_cndmask_b32 v{vZ}, v{vZ}, v{T+9}, vcc")
e(f"v_add_u32 v{vZ}, s9, v{vZ}")
e(f"v_and_b32 v{T+8}, 1, v1")
e(f"v_and_b32 v{T+9}, 30, v1")
e(f"v_lshlrev_b32 v{T+10}, 8, v{T+8}")
e(f"v_add_u32 v{T+10}, 62, v{T+10}")
e(f"v_mul_u32_u24 v{T+11}, 160, v{T+8}")
e(f"v_add_u32 v{T+11}, {512+94}, v{T+11}")
e(f"v_cmp_lt_u32 vcc, 31, v1")
e(f"v_cndmask_b32 v{T+10}, v{T+10}, v{T+11}, vcc")
e(f"v_sub_u32 v{T+10}, v{T+10}, v{T+9}")
e(f"s_add_u32 s12, s9, {SE}")
e(f"v_add_u32 v{vS1}, s12, v{T+10}")
e(f"v_mov_b32 v{T+10}, 128"); e(f"v_mov_b32 v{T+11}, -64")
e(f"v_cndmask_b32 v{T+10}, v{T+10}, v{T+11}, vcc")
e(f"v_add_u32 v{vS2}, v{vS1}, v{T+10}")
e(f"v_bfe_u32 v{T+8}, v1, 2, 2")
e(f"v_mul_u32_u24 v{T+8}, {SWS}, v{T+8}")
e(f"v_and_b32 v{T+9}, 3, v1")
e(f"v_lshl_add_u32 v{T+10}, v{T+1}, 2, v{T+9}")
e(f"v_lshl_add_u32 v{T+8}, v{T+10}, 3, v{T+8}")
e("s_lshl_b32 s12, s8, 7")
e(f"s_add_u32 s12, s12, {YB}")
e(f"v_add_u32 v{vTR}, s12, v{T+8}")
e(f"v_lshrrev_b32 v{T+8}, 2, v1")
e(f"v_lshl_add_u32 v{T+8}, v{T+8}, 4, v{T+9}")
e("s_and_b32 s12, s8, 3"); e("s_lshl_b32 s12, s12, 2")
e("s_lshr_b32 s13, s8, 2"); e("s_lshl_b32 s13, s13, 8")
e("s_add_u32 s12, s12, s13")
e(f"v_add_u32 v{T+8}, s12, v{T+8}")
e(f"v_mul_u32_u24 v{vO}, 2560, v{T+8}")
e("s_lshl_b32 s14, s3, 4")
e(f"v_lshlrev_b32 v{T+8}, 3, v{T+1}")
e(f"v_sub_u32 v{T+8}, v{T+8}, v{T}")
e(f"v_add_u32 v{T+8}, 15, v{T+8}")
e(f"v_min_u32 v{T+8}, 31, v{T+8}")
e("s_mov_b32 s48, 0x3f80"); e("s_mov_b32 s49, 0x3f800000"); e("s_mov_b32 s52, 0xffff")
def bandgen(base, M, lo, hi):
    e(f"v_mov_b32 v{T+9}, 0x{M:x}")
    e(f"v_lshrrev_b32 v{T+9}, v{T+8}, v{T+9}")
    for j in range(4):
        e(f"v_bfe_i32 v{T+10}, v{T+9}, {2*j}, 1")
        e(f"v_bfe_i32 v{T+11}, v{T+9}, {2*j+1}, 1")
        e(f"v_and_b32 v{T+10}, {lo}, v{T+10}")
        e(f"v_and_or_b32 v{base+j}, v{T+11}, {hi}, v{T+10}")
for (c0, h), base in BND.items(): bandgen(base, ((1 << (2*h+1)) - 1) << (c0 - h + 15), "s48", "s49")
bandgen(ASP, 3 << (12 + 15), "s52", "s47")
stamp()
e("s_cmp_eq_u32 s8, 0")
e("s_cbranch_scc1 L_w0")
e("s_waitcnt vmcnt(0)")
uloads()
e("L_w0:")
e("s_waitcnt vmcnt(4)")
stamp()
e("v_mul_f32 v20, s46, v20")
e("v_exp_f32 v20, v20")
e(f"v_cmp_eq_u32 vcc, 0, v1")
e("v_cvt_pk_bf16_f32 v20, v20, v20")
e(f"v_cndmask_b32 v{vDv}, 0, v21, vcc")
e("v_and_b32 v20, s47, v20")
e("v_mul_f32 v34, s46, v20")
e("v_mul_f32 v35, 0.15915494, v20")
e("s_cmp_lg_u32 s5, 0")
e("s_cbranch_scc1 L_prB")
for p in range(3): e(f"v_mul_f32 v{PRM(0,p)}, s46, v{PRM(0,p)}")
for p in range(3): e(f"v_exp_f32 v{PRM(0,p)}, v{PRM(0,p)}")
for p in range(3): e(f"v_mul_f32 v{AI(p)}, v35, v{PRM(1,p)}")
for p in range(3): e(f"v_cvt_pk_bf16_f32 v{PRM(0,p)}, v{PRM(0,p)}, v{PRM(0,p)}")
e(f"v_max3_f32 v{T}, |v{PRM(2,0)}|, |v{PRM(2,1)}|, |v{PRM(2,2)}|")
e(f"v_max3_f32 v{T+1}, |v{PRM(3,0)}|, |v{PRM(3,1)}|, |v{PRM(3,2)}|")
for p in range(3): e(f"v_and_b32 v{PRM(0,p)}, s47, v{PRM(0,p)}")
e(f"v_max_f32 v{T}, v{T}, v{T+1}")
for p in range(3): e(f"v_mul_f32_e64 v{AR(p)}, -v34, v{PRM(0,p)}")
for p in range(3):
    e(f"v_mov_b32 v{CR(p)}, v{PRM(2,p)}"); e(f"v_mov_b32 v{CI(p)}, v{PRM(3,p)}")
e(f"v_add_f32 v{vF}, v20, v20")
e("s_branch L_prE")
e("L_prB:")
for p in range(3): e(f"v_mul_f32 v{AR(p)}, v34, v{PRM(0,p)}")
for p in range(3): e(f"v_mul_f32 v{AI(p)}, v35, v{PRM(1,p)}")
for p in range(3): e(f"v_max_f32 v{T+p}, 0, v{AR(p)}")
for p in range(3): e(f"v_mul_f32 v{T+p}, 0x44e10000, v{T+p}")
for p in range(3): e(f"v_exp_f32 v{T+p}, v{T+p}")
for p in range(3):
    e(f"v_mul_f32 v{CR(p)}, v{PRM(2,p)}, v{PRM(4,p)}")
    e(f"v_mul_f32 v{CI(p)}, v{PRM(2,p)}, v{PRM(5,p)}")
    e(f"v_fma_f32 v{CR(p)}, -v{PRM(3,p)}, v{PRM(5,p)}, v{CR(p)}")
    e(f"v_fmac_f32 v{CI(p)}, v{PRM(3,p)}, v{PRM(4,p)}")
for p in range(3): e(f"v_max_f32_e64 v{T+3+p}, |v{CR(p)}|, |v{CI(p)}|")
for p in range(3): e(f"v_mul_f32 v{T+p}, v{T+p}, v{T+3+p}")
e(f"v_max3_f32 v{T}, v{T}, v{T+1}, v{T+2}")
e(f"v_mov_b32 v{vF}, v20")
e("s_nop 0")
e("L_prE:")
e("s_nop 1")
sc = []
for k in (8, 4, 2, 1): sc.append(f"v_max_f32_dpp v{T}, v{T}, v{T} row_ror:{k} row_mask:0xf bank_mask:0xf")
for k in range(4): sc.append(f"v_readlane_b32 s{53+k}, v{T}, {16*k}")
sc += ["s_max_u32 s53, s53, s54", "s_max_u32 s55, s55, s56", "s_max_u32 s53, s53, s55", "s_lshr_b32 s53, s53, 23",
       "s_max_u32 s53, s53, 16", "s_min_u32 s53, s53, 254", "s_sub_u32 s50, 266, s53", "s_min_u32 s50, s50, 254", "s_lshl_b32 s50, s50, 23", "s_sub_u32 s51, s53, 12", "s_lshl_b32 s51, s51, 23"]
for p in range(3):
    sc.append(f"v_mul_f32 v{CR(p)}, s50, v{CR(p)}"); sc.append(f"v_mul_f32_e64 v{CI(p)}, s50, -v{CI(p)}")
sc.append(f"v_mul_f32 v{vF}, s51, v{vF}")

def cm16(lst, jobs, tmps, conj=False):
    for k in range(0, len(jobs), 2):
        grp = jobs[k:k+2]
        for (d, x, y, row), t in zip(grp, tmps): lst.append(f"v_pk_mul_f16 v{t}, v{x}, v{y} op_sel:[0,0] op_sel_hi:[1,0]")
        for (d, x, y, row), t in zip(grp, tmps): lst.append(f"v_pk_fma_f16 v{d}, v{x}, v{y}, v{t} op_sel:[1,1,0] op_sel_hi:[0,1,1] neg_lo:[1,0,0]")
        for (d, x, y, row) in grp: lst.append(f"ds_write_addtid_b32 v{d} offset:{ROW*row}")
def sq(lst, dr, di, r, i, t):
    lst.append(f"v_mul_f32 v{t}, v{i}, v{i}")
    lst.append(f"v_mul_f32_e64 v{di}, v{r}, v{i} mul:2")
    lst.append(f"v_fma_f32 v{dr}, v{r}, v{r}, -v{t}")
def direct(lst, p, mul, t0, dr, di, neg):
    t1, te, tc, ts = t0 + 1, t0 + 2, t0 + 3, t0 + 4
    if mul:
        lst.append(f"v_mul_f32 v{t0}, {mul}, v{AR(p)}"); lst.append(f"v_mul_f32 v{t1}, {mul}, v{AI(p)}")
        lst.append(f"v_exp_f32 v{te}, v{t0}"); lst.append(f"v_fract_f32 v{t1}, v{t1}")
    else:
        lst.append(f"v_exp_f32 v{te}, v{AR(p)}"); lst.append(f"v_fract_f32 v{t1}, v{AI(p)}")
    lst.append(f"v_cos_f32 v{tc}, v{t1}"); lst.append(f"v_sin_f32 v{ts}, v{t1}")
    lst.append(f"v_mul_f32 v{dr}, v{te}, v{tc}")
    lst.append(f"v_mul_f32_e64 v{di}, v{te}, -v{ts}" if neg else f"v_mul_f32 v{di}, v{te}, v{ts}")
W8R, W8I = 153, 154
def xhead(p):
    s = []
    direct(s, p, "s44", 148, W8R, W8I, False)
    return s
def xstream(p):
    s = []
    cur = (W8R, W8I); nxt = [(155, 156), (157, 158)]
    for k in range(5):
        n = 1 << k
        hb = XK + n if n < 16 else 160
        s.append(f"v_cvt_pk_f16_f32 v{hb}, v{cur[0]}, v{cur[1]}")
        if k < 4:
            d = nxt[k & 1]; sq(s, d[0], d[1], cur[0], cur[1], 159); cur = d
        s.append(f"ds_write_addtid_b32 v{hb} offset:{ROW*n}")
        jobs = [((XK + n + i) if n < 16 else 163 + (i & 3), XK + i, hb, n + i) for i in range(1, n)]
        cm16(s, jobs, (161, 162))
    return s
YR = lambda hi: 32 + ELY.index(hi)
def yhead(p):
    s = []
    direct(s, p, None, 167, 172, 173, True)
    direct(s, p, "s45", 167, 177, 178, True)
    s.append("v_cvt_pk_f16_f32 v179, v172, v173")
    sq(s, 174, 175, 172, 173, 176)
    s.append("v_cvt_pk_f16_f32 v182, v177, v178")
    s.append("v_cvt_pk_f16_f32 v180, v174, v175")
    sq(s, 172, 173, 174, 175, 176)
    s.append("v_cvt_pk_f16_f32 v181, v172, v173")
    return s
def ystream(p):
    s = []
    Y = lambda i: 183 + i
    s.append(f"v_cvt_pk_f16_f32 v{Y(0)}, v{CR(p)}, v{CI(p)}")
    s.append(f"ds_write_addtid_b32 v{Y(0)} offset:{ROW*YR(0)}")
    cm16(s, [(Y(1), Y(0), 179, YR(1)), (Y(2), Y(0), 180, YR(2)), (Y(3), Y(1), 180, YR(3)), (Y(4), Y(0), 181, YR(4)),
             (Y(5), Y(1), 181, YR(5)), (Y(6), Y(2), 181, YR(6)), (Y(7), Y(3), 181, YR(7)), (191, Y(4), 182, YR(260)),
             (195, Y(0), 182, YR(256)), (192, 191, 182, YR(516)), (196, Y(2), 182, YR(258)), (195, Y(6), 182, YR(262)), (196, 192, 182, YR(772))], (193, 194))
    return s
def zstream(p):
    s = []
    zs = [(197, 198), (238, 239)]; zt = 240; zo = [199, 243]
    zr, zi = zs[0]
    s.append(f"v_mul_f32 v{zr}, v{CR(p)}, v{W8R}")
    s.append(f"v_mul_f32 v{zi}, v{CI(p)}, v{W8R}")
    s.append(f"v_fmac_f32 v{zr}, v{CI(p)}, v{W8I}")
    s.append(f"v_fma_f32 v{zi}, -v{CR(p)}, v{W8I}, v{zi}")
    for k in range(8):
        zr, zi = zs[k & 1]; nr, ni = zs[(k + 1) & 1]
        s.append(f"v_cvt_pk_f16_f32 v{zo[k&1]}, v{zr}, v{zi}")
        if k < 7:
            s.append(f"v_mul_f32 v{nr}, v{zr}, v177")
            s.append(f"v_mul_f32 v{ni}, v{zi}, v177")
        s.append(f"ds_write_addtid_b32 v{zo[k&1]} offset:{ROW*YR(8+256*k)}")
        if k < 7:
            s.append(f"v_fma_f32 v{nr}, -v{zi}, v178, v{nr}")
            s.append(f"v_fmac_f32 v{ni}, v{zr}, v178")
    return s
def greads():
    s = []
    for k in range(8):
        s.append(f"ds_read_b128 {v4(YF+4*k)}, v{vYr} offset:{32*k}")
        s.append(f"ds_read_b128 {v4(XF+4*k)}, v{vXr} offset:{32*k}")
    return s
def gmfma(p):
    return [f"v_mfma_f32_32x32x16_f16 v[{KA}:{KA+15}], {v4(YF+4*k)}, {v4(XF+4*k)}, " + ("0" if p == 0 and k == 0 else f"v[{KA}:{KA+15}]") for k in range(8)]
def utrans():
    s = ["s_waitcnt vmcnt(0)"]
    t = 2
    s.append("s_mov_b32 s57, 0x05040100"); s.append("s_mov_b32 s58, 0x07060302")
    for d in range(4):
        for half, sel in ((0, "s57"), (1, "s58")):
            ch = 2 * d + half
            r = t + 2 * (ch & 3)
            s.append(f"v_perm_b32 v{r}, v{UD+4+d}, v{UD+d}, {sel}")
            s.append(f"v_perm_b32 v{r+1}, v{UD+12+d}, v{UD+8+d}, {sel}")
            s.append(f"ds_write_b64 v{vUW}, {v2(r)} offset:{UST*ch}")
    s.append(";@mark uw")
    return s

c += merge(xhead(0) + yhead(0), sc)
for p in range(3):
    c += merge(xstream(p), ystream(p), zstream(p))
    c += greads()
    if p < 2:
        hd = xhead(p + 1) + yhead(p + 1)
        c += hd[:14]
        c += merge(hd[14:], gmfma(p))
    else:
        ut = utrans()
        c += ut[:12]
        c += merge(ut[12:], gmfma(p))
    stamp()
e(";@wait uw")
e("s_barrier")
AD = lambda m: 4 * m
KS = {}
for i, d in enumerate((2, 3, 4)): KS[("A", d)] = 68 + 8 * i; KS[("B", d)] = 72 + 8 * i
for i, d in enumerate((4, 5, 6, 7)): KS[("C", d)] = 92 + 4 * i
ACC = lambda t: 108 + 4 * t
RING = 140; NR = 8; TB = 172
frs = []
for cp in range(8):
    frs.append((cp, 0, 448 + 512 * cp))
    if cp < 6: frs.append((cp, "2", 432 + 512 * cp))
    for m0 in range(1, 8): frs.append((cp, m0, 448 + 512 * cp - 64 * m0))
fidx = {(a, b): n for n, (a, b, _) in enumerate(frs)}
def fread(n): return f"ds_read_b128 {v4(RING + 4 * (n % NR))}, v{vU} offset:{frs[n][2]}"
Z = 188
for r in range(4): e(f"v_mov_b32 v{Z+r}, 0")
e(f"ds_write_b128 v{vZ1}, {v4(Z)}")
e(f"ds_write_b128 v{vZ}, {v4(Z)}")
for n in range(NR): e(fread(n))
a = lambda r: KA + r
e(f"v_fma_f32 v{a(0)}, v{a(0)}, v{vF}, v{vDv}")
for r in range(1, 13): e(f"v_mul_f32 v{a(r)}, v{vF}, v{a(r)}")
for j in range(4): e(f"v_cvt_pk_bf16_f32 v{172+j}, v{a(7-2*j)}, v{a(6-2*j)}")
e(f"ds_write_b128 v{vDW}, {v4(172)}")
for j in range(4): e(f"v_cvt_pk_bf16_f32 v{176+j}, v{a(8-2*j)}, v{a(7-2*j)}")
e(f"ds_write_b128 v{vDW}, {v4(176)} offset:{KO}")
e(f"v_cvt_pk_bf16_f32 v182, 0, v{a(8)}")
e(f"v_cvt_pk_bf16_f32 v183, v{a(8)}, v{a(8)}")
e(f"v_cvt_pk_bf16_f32 v184, v{a(0)}, 0")
e(f"v_mov_b32 v186, s9")
e("s_mov_b64 exec, 1")
e(f"ds_write_b32 v186, v184 offset:{KO + 2*544}")
e("s_mov_b32 exec_lo, 0"); e("s_mov_b32 exec_hi, 0x80000000")
e(f"ds_write_b64 v186, {v2(182)} offset:{2*28}")
e(f"ds_write_b32 v186, v183 offset:{KO + 2*30}")
e("s_mov_b64 exec, -1")
e(f"v_cvt_pk_bf16_f32 v180, v{a(9)}, v{a(10)}")
e(f"v_cvt_pk_bf16_f32 v181, v{a(11)}, v{a(12)}")
e(f"v_cvt_pk_bf16_f32 v185, v{a(12)}, v{a(12)}")
def aread(m):
    off = 16 * (16 - m); base = vKd
    if off >= 128: off -= 128; base = vKd2
    return [f"ds_read2_b32 {v2(AD(m))}, v{base} offset0:{off} offset1:{off+1}", f"ds_read2_b32 {v2(AD(m)+2)}, v{base} offset0:{off+2} offset1:{off+3}"]
e("v_readlane_b32 s59, v185, 31")
for m in (0, 8, 16, 1, 9): c += aread(m)
for disp in (0, SO + 2):
    e(f"ds_write_b16 v{vS1}, v180 offset:{disp+32}")
    e(f"ds_write_b16_d16_hi v{vS1}, v180 offset:{disp}")
    e(f"ds_write_b16 v{vS2}, v181 offset:{disp+32}")
    e(f"ds_write_b16_d16_hi v{vS2}, v181 offset:{disp}")
for j in range(4): e(f"v_and_b32 v{ASP+j}, s59, v{ASP+j}")
late = []
for m in (2, 10, 3, 11, 4, 12, 5, 13, 6, 14, 7, 15): late += aread(m)
def sread(key):
    t, d = key
    b0, b1, top = {"A": (0, 128, 4), "B": (256, 384, 4), "C": (512, 672, 7)}[t]
    o0 = b0 // 4 + 8 * (top - d); o1 = b1 // 4 + 8 * (top - d)
    return [f"ds_read2_b32 {v2(KS[key])}, v{vKs} offset0:{o0} offset1:{o0+1}", f"ds_read2_b32 {v2(KS[key]+2)}, v{vKs} offset0:{o1} offset1:{o1+1}"]
for key in KS: late += sread(key)
stamp()
touched = set()
def mf(t, A, B):
    C = v4(ACC(t)) if t in touched else "0"
    touched.add(t)
    return f"v_mfma_f32_16x16x32_bf16 {v4(ACC(t))}, {v4(A)}, {v4(B)}, {C}"
def outw(t):
    r = YC + 2 * (t & 1)
    return [f"v_cvt_pk_bf16_f32 v{r}, v{ACC(t)}, v{ACC(t)+1}", f"v_cvt_pk_bf16_f32 v{r+1}, v{ACC(t)+2}, v{ACC(t)+3}",
            f"ds_write_b64 v{vYW}, {v2(r)} offset:{512*t}", f";@mark y{t}"]
def bar_tr(pair):
    return [f";@wait y{2*pair+1}", "s_barrier",
            f"ds_read_b64_tr_b16 {v2(TRD)}, v{vTR} offset:{1024*pair}", f"ds_read_b64_tr_b16 {v2(TRD+2)}, v{vTR} offset:{1024*pair + 4*SWS}"]
def store(pair):
    return [f"s_add_u32 s15, s14, {512*2560*pair}", f"buffer_store_dwordx4 {v4(TRD)}, v{vO}, s[40:43], s15 offen"]
pend = []
for cp in range(8):
    ms = []
    F = lambda key: RING + 4 * (fidx[key] % NR)
    b1 = F((cp, 0))
    if cp < 6:
        b2 = F((cp, "2"))
        box = [(0, b1, (12,1)), (1, b1, (8,2)), (2, b2, (12,1)), (3, b2, (8,2))]
        if cp < 4: box += [(4, b1, (8,3)), (5, b2, (8,4))]
        for k, (t, fr, bd) in enumerate(box):
            ms.append([f"v_mfma_f32_16x16x32_bf16 {v4(TB+4*t)}, {v4(fr)}, {v4(BND[bd])}, 0", fidx[(cp, "2")] if k == len(box) - 1 else None])
    ms.append([mf(cp, AD(0), b1), None])
    if cp < 7: ms.append([mf(cp + 1, AD(8), b1), None])
    if cp < 6: ms.append([mf(cp + 2, AD(16), b1), None])
    if cp < 4: ms.append([mf(cp + 4, ASP, b1), None])
    ms[-1][1] = fidx[(cp, 0)]
    nhead = len(ms)
    for m0 in range(1, 8):
        f = F((cp, m0))
        ms.append([mf(cp, AD(m0), f), None])
        if cp < 7: ms.append([mf(cp + 1, AD(8 + m0), f), None])
        ms[-1][1] = fidx[(cp, m0)]
    ndense = len(ms)
    cv = []
    if cp < 6:
        for pr in range(3 if cp < 4 else 2):
            t = TB + 8 * pr
            for j in range(4): cv.append(f"v_cvt_pk_bf16_f32 v{t+j}, v{t+2*j}, v{t+2*j+1}")
        for d in (2, 3, 4):
            if cp + d < 8:
                ms.append([mf(cp + d, TB, KS[("A", d)]), None]);
        for d in (2, 3, 4):
            if cp + d < 8:
                ms.append([mf(cp + d, TB + 8, KS[("B", d)]), None])
        if cp < 4:
            for d in (4, 5, 6, 7):
                if cp + d < 8: ms.append([mf(cp + d, TB + 16, KS[("C", d)]), None])
    side = {k: [] for k in range(len(ms))}
    pos = 1
    for grp in pend:
        side[min(pos, len(ms) - 1)] += grp; pos += 4
    pend = []
    if cp == 0:
        per = 4
        k = 0
        while late:
            side[k] += late[:per]; late = late[per:]; k += 1
    k = nhead + 1
    for x in cv:
        side[min(k, ndense - 2)].append(x); k += 1
    for k, (txt, rel) in enumerate(ms):
        e(txt)
        if rel is not None and rel + NR < len(frs): e(fread(rel + NR))
        c += side[k]
    pend.append(outw(cp))
    if cp & 1:
        pend.append(bar_tr(cp >> 1)); pend.append(store(cp >> 1))
stamp()
for grp in pend: c += grp
if STAMP:
    stamp()
    e("s_waitcnt vmcnt(0)")
    stamp()
    e("s_lshl_b32 s12, s2, 3"); e("s_add_u32 s12, s12, s8"); e("s_lshl_b32 s12, s12, 7")
    e("v_mov_b32 v0, s12")
    for k in range(nstamp[0]):
        e(f"v_mov_b32 v2, s{70+2*k}"); e(f"v_mov_b32 v3, s{71+2*k}")
        e(f"global_store_dwordx2 v0, v[2:3], s[66:67] offset:{8*k}")
e("L_end:")

def add_waits(lines):
    out = []; q = []; marks = {}
    issued = 0; done = 0
    dests = []
    for t in lines:
        if t.startswith(";@mark"): marks[t.split()[1]] = issued; continue
        if t.startswith(";@wait"):
            k = marks[t.split()[1]]
            if k > done:
                out.append(f"s_waitcnt lgkmcnt({min(15, issued - k)})"); done = max(done, issued - min(15, issued - k))
            continue
        i = Ins(t)
        if i.kind == "label": out.append(t); continue
        if i.op == "s_waitcnt" and "lgkmcnt(0)" in t: done = issued
        needk = 0
        touch = i.r | i.w
        for k in range(done, issued):
            if dests[k] & touch and not (i.kind == "ds" and not (dests[k] & i.r)): needk = k + 1
        if needk > done:
            n = min(15, issued - needk)
            out.append(f"s_waitcnt lgkmcnt({n})"); done = issued - n
        out.append(t)
        if i.kind == "ds": dests.append(i.w); issued += 1
    return out
c = add_waits(c)
body, nn = fix_hazards(c)
hdr = open("cdna_kernels/" + NAME + ".s.ref").read().split("\n")
hdr = [l for l in hdr if l.startswith(";") and "@launch" not in l]
src = "\n".join(hdr) + f"\n; @launch grid=(160,1,1) block=(512,1,1) lds={LDS}\n"
src += f""".amdgcn_target "amdgcn-amd-amdhsa--gfx950"
.text
.globl {NAME}_kernel
.p2align 8
.type {NAME}_kernel,@function
{NAME}_kernel:
""" + "\n".join(body) + f"""
    s_endpgm
.section .rodata,"a"
.p2align 6
.amdhsa_kernel {NAME}_kernel
  .amdhsa_next_free_vgpr 256
  .amdhsa_next_free_sgpr 102
  .amdhsa_accum_offset 256
  .amdhsa_group_segment_fixed_size 0
  .amdhsa_kernarg_size 152
  .amdhsa_user_sgpr_count 2
  .amdhsa_user_sgpr_kernarg_segment_ptr 1
  .amdhsa_system_sgpr_workgroup_id_x 1
  .amdhsa_ieee_mode 0
.end_amdhsa_kernel
"""
out = [a for a in sys.argv[1:] if not a.startswith("--")]
path = out[0] if out else "cdna_kernels/" + NAME + ".s"
open(path, "w").write(src)
print("wrote", path, "instrs", len(body), "nops inserted", nn)
```

```python
import sys, re
from asmlib import *
NAME = "concat_heads__ssm_conv_s4d__ssm_conv_s4__prompt"
STAMP = "--stamp" in sys.argv
SWS = 14912; ROW = 272; U0 = 8 * SWS; UST = 4576; LDS = U0 + 8 * UST
KO = 1216; SE = 2368; SO = 832; YB = 4096
ELY = [0,1,2,3,262,264, 260,1032,1288,1544,776,258,516,772,520,1800, 4,5,6,7,8,256]
HI0 = list(range(9)) + [516, 772, 520, 776] + [776] * 3
HI1 = [256 + x for x in [0,0,2,4,4,4,6,8,8]] + [1032,1288,1544,1800] + [1800] * 3
SLOT = [ELY.index((HI1 if (r >> 2) & 1 else HI0)[(r & 3) + 4 * (r >> 3)]) for r in range(32)]

BND = {(12,1): 200, (8,2): 204, (8,3): 208, (8,4): 212}; ASP = 216
vU, vKd, vKd2, vKs, vYW, vTR, vO, vZ, vS1, vS2, vDW, vXr, vYr, vUW, vUL, vP, vDv, vF = range(220, 238)
vQ = 241; vZ1 = 242; vCN = 252; vOne = 253; vRT = 254
TRD = 244; YC = 248
def v4(r): return f"v[{r}:{r+3}]"
def v2(r): return f"v[{r}:{r+1}]"
PRM = lambda a, p: 2 + 3 * a + p
AR = lambda p: 22 + 2 * p
AI = lambda p: 23 + 2 * p
CR = lambda p: 28 + 2 * p
CI = lambda p: 29 + 2 * p
CNT = LDS; LDS += 64
UD = 36; KA = 52; XF = 68; YF = 100; XK = 132

c = []
e = c.append
nstamp = [0]
def stamp():
    if STAMP:
        k = nstamp[0]; nstamp[0] += 1
        e(f"s_memtime s[{70+2*k}:{71+2*k}]")
        e("s_waitcnt lgkmcnt(0)")

e("s_cmp_ge_u32 s2, 160")
e("s_cbranch_scc1 L_end")
if STAMP:
    e("s_memtime s[70:71]"); nstamp[0] = 1
    e("s_memrealtime s[96:97]")
e("s_and_b32 s3, s2, 7")
e("s_mul_i32 s3, s3, 20")
e("s_lshr_b32 s4, s2, 3")
e("s_add_u32 s3, s3, s4")
e("s_cmp_ge_u32 s3, 80")
e("s_cselect_b32 s5, 56, 0")
e("s_cselect_b32 s6, 80, 0")
e("s_load_dwordx16 s[16:31], s[0:1], s5")
e("s_load_dwordx4 s[32:35], s[0:1], 120")
if STAMP: e("s_load_dwordx2 s[66:67], s[0:1], 144")
e("s_sub_u32 s4, s3, s6")
e("v_lshrrev_b32 v2, 6, v0")
e("v_and_b32 v1, 63, v0")
e("v_readfirstlane_b32 s8, v2")
e("s_lshl_b32 s11, s4, 3")
e("s_add_u32 s11, s11, s8")
e("s_mul_i32 s12, s11, 384")
e("s_lshl_b32 s13, s11, 1")
e(f"v_lshl_add_u32 v{vP}, v1, 1, s12")
e(f"v_mov_b32 v{vQ}, s13")
e("s_add_u32 s10, s8, s3")
e("s_and_b32 s10, s10, 7")
e("s_mul_i32 s12, s10, %d" % (256 * 1280))
e("s_lshl_b32 s13, s4, 4")
e("s_add_u32 s12, s12, s13")
e(f"v_mul_u32_u24 v{vUL}, 5120, v1")
e(f"v_add_u32 v{vUL}, s12, v{vUL}")
for r in range(2, 22): e(f"v_mov_b32 v{r}, 0")
e("s_mul_i32 s9, s8, %d" % SWS)
e("s_mov_b32 s38, %d" % (2048 * 1280))
e("s_mov_b32 s39, 0x20000")
e("s_mov_b32 s42, %d" % (2048 * 2560))
e("s_mov_b32 s43, 0x20000")
e("s_cmp_lg_u32 s5, 0")
e("s_waitcnt lgkmcnt(0)")
e("s_cbranch_scc1 L_ldB")
e(f"global_load_short_d16_hi v20, v{vQ}, s[26:27]")
for p in range(3):
    for a in range(4): e(f"global_load_short_d16_hi v{PRM(a,p)}, v{vP}, s[{18+2*a}:{19+2*a}] offset:{128*p}")
e(f"global_load_short_d16_hi v21, v{vQ}, s[28:29]")
e("s_branch L_ldE")
e("L_ldB:")
e(f"global_load_short_d16_hi v20, v{vQ}, s[30:31]")
for p in range(3):
    for a in range(6): e(f"global_load_short_d16_hi v{PRM(a,p)}, v{vP}, s[{18+2*a}:{19+2*a}] offset:{128*p}")
e(f"global_load_short_d16_hi v21, v{vQ}, s[32:33]")
e("L_ldE:")
e("s_mov_b32 s36, s16"); e("s_mov_b32 s37, s17")
e("s_mov_b32 s40, s34"); e("s_mov_b32 s41, s35")
def uloads():
    for i in range(4): e(f"buffer_load_dwordx4 {v4(UD+4*i)}, v{vUL}, s[36:39], 0 offen offset:{1280*i}")
e("s_setprio 3")
e(f"v_lshlrev_b32 v140, 2, v1")
e(f"v_add_u32 v140, {CNT}, v140")
e("v_mov_b32 v141, 0")
e("s_mov_b64 exec, 0xffff")
e("ds_write_b32 v140, v141")
e("s_mov_b64 exec, -1")
e("s_waitcnt lgkmcnt(0)")
e("s_barrier")
e("s_cmp_lg_u32 s8, 0")
e("s_cbranch_scc1 L_nou")
uloads()
e("L_nou:")
e("s_mov_b32 m0, s9")
e("s_mov_b32 s44, 0x41000000")
e("s_mov_b32 s45, 0x43800000")
e("s_mov_b32 s46, 0x3fb8aa3b")
e("s_mov_b32 s47, 0xffff0000")
T = 140
e(f"v_and_b32 v{T}, 15, v1")
e(f"v_lshrrev_b32 v{T+1}, 4, v1")
e(f"v_and_b32 v{T+2}, 31, v1")
e(f"v_lshrrev_b32 v{T+3}, 5, v1")
e(f"v_mov_b32 v{XK}, 0x3c00")
e(f"ds_write_addtid_b32 v{XK} offset:0")
e("s_mul_i32 s12, s8, %d" % UST)
e("s_add_u32 s12, s12, %d" % U0)
e(f"v_lshl_add_u32 v{T+4}, v1, 3, s12")
e(f"v_mov_b32 v{T+6}, 0"); e(f"v_mov_b32 v{T+7}, 0")
e("s_mov_b32 exec_hi, 0x0fffffff")
e(f"ds_write_b64 v{T+4}, {v2(T+6)}")
e("s_mov_b32 exec_hi, -1")
e(f"v_lshl_add_u32 v{vU}, v{T}, 5, s12")
e(f"v_lshl_add_u32 v{vU}, v{T+1}, 4, v{vU}")
e("s_lshl_b32 s12, s10, 9")
e("s_add_u32 s12, s12, %d" % (U0 + 480))
e(f"v_lshl_add_u32 v{vUW}, v1, 3, s12")
e(f"v_mul_u32_u24 v{vXr}, {ROW}, v{T+2}")
e(f"v_lshl_add_u32 v{T+4}, v{T+3}, 4, s9")
e(f"v_add_u32 v{vXr}, v{vXr}, v{T+4}")
def nib(lo): return sum((SLOT[lo + k] & 15) << (4 * k) for k in range(8))
hib = sum(((SLOT[k] >> 4) & 1) << k for k in range(32))
e(f"v_mov_b32 v{T+8}, 0x{nib(0):08x}"); e(f"v_mov_b32 v{T+9}, 0x{nib(8):08x}")
e(f"v_mov_b32 v{T+10}, 0x{nib(16):08x}"); e(f"v_mov_b32 v{T+11}, 0x{nib(24):08x}")
e(f"v_cmp_lt_u32 vcc, 15, v{T+2}")
e(f"v_cndmask_b32 v{T+8}, v{T+8}, v{T+10}, vcc")
e(f"v_cndmask_b32 v{T+9}, v{T+9}, v{T+11}, vcc")
e(f"v_lshlrev_b32 v{T+10}, 2, v{T}")
e(f"v_lshrrev_b64 {v2(T+8)}, v{T+10}, {v2(T+8)}")
e(f"v_and_b32 v{T+8}, 15, v{T+8}")
e(f"v_mov_b32 v{T+9}, 0x{hib:08x}")
e(f"v_bfe_u32 v{T+9}, v{T+9}, v{T+2}, 1")
e(f"v_lshl_or_b32 v{T+8}, v{T+9}, 4, v{T+8}")
e(f"v_add_u32 v{T+8}, 32, v{T+8}")
e(f"v_mul_u32_u24 v{vYr}, {ROW}, v{T+8}")
e(f"v_add_u32 v{vYr}, v{vYr}, v{T+4}")
e(f"v_and_b32 v{T+8}, 1, v{T}")
e(f"v_add_u32 v{T+9}, v{T}, v{T+8}")
e(f"v_sub_u32 v{T+9}, 16, v{T+9}")
e(f"v_lshl_add_u32 v{T+9}, v{T+9}, 1, s9")
e(f"v_xor_b32 v{T+8}, 1, v{T+8}")
e(f"v_mul_u32_u24 v{T+10}, {KO}, v{T+8}")
e(f"v_lshl_add_u32 v{vKd}, v{T+1}, 4, v{T+9}")
e(f"v_add_u32 v{vKd}, v{vKd}, v{T+10}")
e(f"v_add_u32 v{vKd2}, 512, v{vKd}")
e(f"v_mul_u32_u24 v{T+10}, {SO}, v{T+8}")
e(f"v_lshl_add_u32 v{vKs}, v{T+1}, 3, v{T+9}")
e(f"v_add_u32 v{vKs}, v{vKs}, v{T+10}")
e(f"v_add_u32 v{vKs}, {SE}, v{vKs}")
e(f"s_add_u32 s12, s9, {YB}")
e(f"v_lshl_add_u32 v{vYW}, v1, 3, s12")
e(f"v_lshlrev_b32 v{T+8}, 4, v1")
e("s_add_u32 s12, s9, 1072")
e(f"v_sub_u32 v{vDW}, s12, v{T+8}")
e("s_add_u32 s12, s9, 3008")
e(f"v_add_u32 v{vZ1}, s12, v{T+8}")
e(f"v_add_u32 v{vZ}, 2304, v{T+8}")
e(f"v_add_u32 v{T+9}, {1088-16*44}, v{T+8}")
e(f"v_cmp_lt_u32 vcc, 43, v1")
e(f"v_cndmask_b32 v{vZ}, v{vZ}, v{T+9}, vcc")
e(f"v_and_b32 v{T+9}, 48, v{T+8}")
e(f"v_cmp_lt_u32 vcc, 55, v1")
e(f"v_cndmask_b32 v{vZ}, v{vZ}, v{T+9}, vcc")
e(f"v_add_u32 v{vZ}, s9, v{vZ}")
e(f"v_and_b32 v{T+8}, 1, v1")
e(f"v_and_b32 v{T+9}, 30, v1")
e(f"v_lshlrev_b32 v{T+10}, 8, v{T+8}")
e(f"v_add_u32 v{T+10}, 62, v{T+10}")
e(f"v_mul_u32_u24 v{T+11}, 160, v{T+8}")
e(f"v_add_u32 v{T+11}, {512+94}, v{T+11}")
e(f"v_cmp_lt_u32 vcc, 31, v1")
e(f"v_cndmask_b32 v{T+10}, v{T+10}, v{T+11}, vcc")
e(f"v_sub_u32 v{T+10}, v{T+10}, v{T+9}")
e(f"s_add_u32 s12, s9, {SE}")
e(f"v_add_u32 v{vS1}, s12, v{T+10}")
e(f"v_mov_b32 v{T+10}, 128"); e(f"v_mov_b32 v{T+11}, -64")
e(f"v_cndmask_b32 v{T+10}, v{T+10}, v{T+11}, vcc")
e(f"v_add_u32 v{vS2}, v{vS1}, v{T+10}")
e(f"v_bfe_u32 v{T+8}, v1, 2, 2")
e(f"v_mul_u32_u24 v{T+8}, {SWS}, v{T+8}")
e(f"v_and_b32 v{T+9}, 3, v1")
e(f"v_lshl_add_u32 v{T+10}, v{T+1}, 2, v{T+9}")
e(f"v_lshl_add_u32 v{T+8}, v{T+10}, 3, v{T+8}")
e(f"v_add_u32 v{vTR}, {YB}, v{T+8}")
e(f"v_lshrrev_b32 v{T+8}, 2, v1")
e(f"v_lshl_add_u32 v{T+8}, v{T+8}, 4, v{T+9}")
e(f"v_mov_b32 v{vCN}, {CNT}"); e(f"v_mov_b32 v{vOne}, 1")
e(f"v_mul_u32_u24 v{vO}, 2560, v{T+8}")
e("s_lshl_b32 s14, s3, 4")
e(f"v_lshlrev_b32 v{T+8}, 3, v{T+1}")
e(f"v_sub_u32 v{T+8}, v{T+8}, v{T}")
e(f"v_add_u32 v{T+8}, 15, v{T+8}")
e(f"v_min_u32 v{T+8}, 31, v{T+8}")
e("s_mov_b32 s48, 0x3f80"); e("s_mov_b32 s49, 0x3f800000"); e("s_mov_b32 s52, 0xffff")
def bandgen(base, M, lo, hi):
    e(f"v_mov_b32 v{T+9}, 0x{M:x}")
    e(f"v_lshrrev_b32 v{T+9}, v{T+8}, v{T+9}")
    for j in range(4):
        e(f"v_bfe_i32 v{T+10}, v{T+9}, {2*j}, 1")
        e(f"v_bfe_i32 v{T+11}, v{T+9}, {2*j+1}, 1")
        e(f"v_and_b32 v{T+10}, {lo}, v{T+10}")
        e(f"v_and_or_b32 v{base+j}, v{T+11}, {hi}, v{T+10}")
for (c0, h), base in BND.items(): bandgen(base, ((1 << (2*h+1)) - 1) << (c0 - h + 15), "s48", "s49")
bandgen(ASP, 3 << (12 + 15), "s52", "s47")
stamp()
e("s_cmp_eq_u32 s8, 0")
e("s_cbranch_scc1 L_w0")
e("s_waitcnt vmcnt(0)")
uloads()
e("L_w0:")
e("s_waitcnt vmcnt(4)")
stamp()
e("v_mul_f32 v20, s46, v20")
e("v_exp_f32 v20, v20")
e(f"v_cmp_eq_u32 vcc, 0, v1")
e("v_cvt_pk_bf16_f32 v20, v20, v20")
e(f"v_cndmask_b32 v{vDv}, 0, v21, vcc")
e("v_and_b32 v20, s47, v20")
e("v_mul_f32 v34, s46, v20")
e("v_mul_f32 v35, 0.15915494, v20")
e("s_cmp_lg_u32 s5, 0")
e("s_cbranch_scc1 L_prB")
for p in range(3): e(f"v_mul_f32 v{PRM(0,p)}, s46, v{PRM(0,p)}")
for p in range(3): e(f"v_exp_f32 v{PRM(0,p)}, v{PRM(0,p)}")
for p in range(3): e(f"v_mul_f32 v{AI(p)}, v35, v{PRM(1,p)}")
for p in range(3): e(f"v_cvt_pk_bf16_f32 v{PRM(0,p)}, v{PRM(0,p)}, v{PRM(0,p)}")
e(f"v_max3_f32 v{T}, |v{PRM(2,0)}|, |v{PRM(2,1)}|, |v{PRM(2,2)}|")
e(f"v_max3_f32 v{T+1}, |v{PRM(3,0)}|, |v{PRM(3,1)}|, |v{PRM(3,2)}|")
for p in range(3): e(f"v_and_b32 v{PRM(0,p)}, s47, v{PRM(0,p)}")
e(f"v_max_f32 v{T}, v{T}, v{T+1}")
for p in range(3): e(f"v_mul_f32_e64 v{AR(p)}, -v34, v{PRM(0,p)}")
for p in range(3):
    e(f"v_mov_b32 v{CR(p)}, v{PRM(2,p)}"); e(f"v_mov_b32 v{CI(p)}, v{PRM(3,p)}")
e(f"v_add_f32 v{vF}, v20, v20")
e("s_branch L_prE")
e("L_prB:")
for p in range(3): e(f"v_mul_f32 v{AR(p)}, v34, v{PRM(0,p)}")
for p in range(3): e(f"v_mul_f32 v{AI(p)}, v35, v{PRM(1,p)}")
for p in range(3): e(f"v_max_f32 v{T+p}, 0, v{AR(p)}")
for p in range(3): e(f"v_mul_f32 v{T+p}, 0x44e10000, v{T+p}")
for p in range(3): e(f"v_exp_f32 v{T+p}, v{T+p}")
for p in range(3):
    e(f"v_mul_f32 v{CR(p)}, v{PRM(2,p)}, v{PRM(4,p)}")
    e(f"v_mul_f32 v{CI(p)}, v{PRM(2,p)}, v{PRM(5,p)}")
    e(f"v_fma_f32 v{CR(p)}, -v{PRM(3,p)}, v{PRM(5,p)}, v{CR(p)}")
    e(f"v_fmac_f32 v{CI(p)}, v{PRM(3,p)}, v{PRM(4,p)}")
for p in range(3): e(f"v_max_f32_e64 v{T+3+p}, |v{CR(p)}|, |v{CI(p)}|")
for p in range(3): e(f"v_mul_f32 v{T+p}, v{T+p}, v{T+3+p}")
e(f"v_max3_f32 v{T}, v{T}, v{T+1}, v{T+2}")
e(f"v_mov_b32 v{vF}, v20")
e("s_nop 0")
e("L_prE:")
e("s_nop 1")
for p in range(3): e(f"v_rndne_f32 v{T+3+p}, v{AI(p)}")
for p in range(3): e(f"v_sub_f32 v{AI(p)}, v{AI(p)}, v{T+3+p}")
sc = []
for k in (8, 4, 2, 1): sc.append(f"v_max_f32_dpp v{T}, v{T}, v{T} row_ror:{k} row_mask:0xf bank_mask:0xf")
for k in range(4): sc.append(f"v_readlane_b32 s{53+k}, v{T}, {16*k}")
sc += ["s_max_u32 s53, s53, s54", "s_max_u32 s55, s55, s56", "s_max_u32 s53, s53, s55", "s_lshr_b32 s53, s53, 23",
       "s_max_u32 s53, s53, 16", "s_min_u32 s53, s53, 254", "s_sub_u32 s50, 266, s53", "s_min_u32 s50, s50, 254", "s_lshl_b32 s50, s50, 23", "s_sub_u32 s51, s53, 12", "s_lshl_b32 s51, s51, 23"]
for p in range(3):
    sc.append(f"v_pk_mul_f32 {v2(CR(p))}, {v2(CR(p))}, s[50:51] op_sel_hi:[1,0] neg_hi:[1,0]")
sc.append(f"v_mul_f32 v{vF}, s51, v{vF}")

def cm16(lst, jobs, tmps, conj=False):
    for k in range(0, len(jobs), 2):
        grp = jobs[k:k+2]
        for (d, x, y, row), t in zip(grp, tmps): lst.append(f"v_pk_mul_f16 v{t}, v{x}, v{y} op_sel:[0,0] op_sel_hi:[1,0]")
        for (d, x, y, row), t in zip(grp, tmps): lst.append(f"v_pk_fma_f16 v{d}, v{x}, v{y}, v{t} op_sel:[1,1,0] op_sel_hi:[0,1,1] neg_lo:[1,0,0]")
        for (d, x, y, row) in grp: lst.append(f"ds_write_addtid_b32 v{d} offset:{ROW*row}")
def cm32a(t, x, y): return f"v_pk_mul_f32 {v2(t)}, {v2(x)}, {v2(y)} op_sel:[0,0] op_sel_hi:[1,0]"
def cm32b(d, x, y, t, conj=False): return f"v_pk_fma_f32 {v2(d)}, {v2(x)}, {v2(y)}, {v2(t)} op_sel:[1,1,0] op_sel_hi:[0,1,1] " + ("neg_hi:[1,0,0]" if conj else "neg_lo:[1,0,0]")
def direct(lst, p, sel, t0, d, neg):
    if sel is not None:
        lst.append(f"v_pk_mul_f32 {v2(t0)}, {v2(AR(p))}, s[44:45] op_sel:[0,{sel}] op_sel_hi:[1,{sel}]")
        ar, ai = t0, t0 + 1
    else: ar, ai = AR(p), AI(p)
    lst.append(f"v_exp_f32 v{t0+2}, v{ar}")
    lst.append(f"v_cos_f32 v{t0+4}, v{ai}"); lst.append(f"v_sin_f32 v{t0+5}, v{ai}")
    lst.append(f"v_pk_mul_f32 {v2(d)}, {v2(t0+4)}, {v2(t0+2)} op_sel:[0,0] op_sel_hi:[1,0]" + (" neg_hi:[1,0]" if neg else ""))
W8 = 154; W1 = 172; W2 = 174; W256 = 176
def head(p):
    a = []; b = []; d = []
    direct(a, p, 0, 148, W8, False)
    direct(b, p, None, 166, W1, True)
    direct(d, p, 1, 184, W256, True)
    s = merge(a, b, d)
    s += [cm32a(166, W1, W1), f"v_cvt_pk_f16_f32 v179, v{W1}, v{W1+1}", cm32b(W2, W1, W1, 166), f"v_cvt_pk_f16_f32 v182, v{W256}, v{W256+1}",
          cm32a(166, W2, W2), f"v_cvt_pk_f16_f32 v180, v{W2}, v{W2+1}", cm32b(W1, W2, W2, 166)]
    return s
def xstream(p):
    s = []
    cur = W8; nxt = [156, 158]
    for k in range(5):
        n = 1 << k
        hb = XK + n if n < 16 else 160
        if k < 4: s.append(cm32a(148, cur, cur))
        s.append(f"v_cvt_pk_f16_f32 v{hb}, v{cur}, v{cur+1}")
        if k < 4:
            d = nxt[k & 1]; s.append(cm32b(d, cur, cur, 148)); cur = d
        s.append(f"ds_write_addtid_b32 v{hb} offset:{ROW*n}")
        jobs = [((XK + n + i) if n < 16 else 150 + (i & 3), XK + i, hb, n + i) for i in range(1, n)]
        cm16(s, jobs, (161, 162))
    return s
YR = lambda hi: 32 + ELY.index(hi)
def ystream(p):
    s = []
    Y = lambda i: 183 + i
    s.append(f"v_cvt_pk_f16_f32 v{Y(0)}, v{CR(p)}, v{CI(p)}")
    s.append(f"v_cvt_pk_f16_f32 v181, v{W1}, v{W1+1}")
    s.append(f"ds_write_addtid_b32 v{Y(0)} offset:{ROW*YR(0)}")
    cm16(s, [(Y(1), Y(0), 179, YR(1)), (Y(2), Y(0), 180, YR(2)), (Y(3), Y(1), 180, YR(3)), (Y(4), Y(0), 181, YR(4)),
             (Y(5), Y(1), 181, YR(5)), (Y(6), Y(2), 181, YR(6)), (Y(7), Y(3), 181, YR(7)), (191, Y(4), 182, YR(260)),
             (195, Y(0), 182, YR(256)), (192, 191, 182, YR(516)), (196, Y(2), 182, YR(258)), (195, Y(6), 182, YR(262)), (196, 192, 182, YR(772))], (193, 194))
    return s
def zstream(p):
    s = []
    zs = [164, 168]; zt = 166; zo = [170, 171]
    s.append(cm32a(zt, CR(p), W8)); s.append(cm32b(zs[0], CR(p), W8, zt, conj=True))
    for k in range(8):
        z = zs[k & 1]; n = zs[(k + 1) & 1]
        if k < 7: s.append(cm32a(zt, z, W256))
        s.append(f"v_cvt_pk_f16_f32 v{zo[k&1]}, v{z}, v{z+1}")
        if k < 7: s.append(cm32b(n, z, W256, zt))
        s.append(f"ds_write_addtid_b32 v{zo[k&1]} offset:{ROW*YR(8+256*k)}")
    return s
def greads():
    s = []
    for k in range(8):
        s.append(f"ds_read_b128 {v4(YF+4*k)}, v{vYr} offset:{32*k}")
        s.append(f"ds_read_b128 {v4(XF+4*k)}, v{vXr} offset:{32*k}")
    return s
def gmfma(p):
    return [f"v_mfma_f32_32x32x16_f16 v[{KA}:{KA+15}], {v4(YF+4*k)}, {v4(XF+4*k)}, " + ("0" if p == 0 and k == 0 else f"v[{KA}:{KA+15}]") for k in range(8)]
def utrans():
    s = ["s_waitcnt vmcnt(0)"]
    t = 2
    s.append("s_mov_b32 s57, 0x05040100"); s.append("s_mov_b32 s58, 0x07060302")
    for d in range(4):
        for half, sel in ((0, "s57"), (1, "s58")):
            ch = 2 * d + half
            r = t + 2 * (ch & 3)
            s.append(f"v_perm_b32 v{r}, v{UD+4+d}, v{UD+d}, {sel}")
            s.append(f"v_perm_b32 v{r+1}, v{UD+12+d}, v{UD+8+d}, {sel}")
            s.append(f"ds_write_b64 v{vUW}, {v2(r)} offset:{UST*ch}")
    s += ["s_mov_b64 exec, 1", f"ds_add_u32 v{vCN}, v{vOne} offset:32", "s_mov_b64 exec, -1"]
    return s

def filt(l):
    if "--nowr" in sys.argv: l = [x for x in l if not x.startswith("ds_write_addtid")]
    if "--nord" in sys.argv: l = [x for x in l if not x.startswith("ds_read_b128")]
    if "--nomf" in sys.argv: l = [x for x in l if not x.startswith("v_mfma")]
    if "--nopk" in sys.argv: l = [x for x in l if not x.startswith("v_pk_")]
    return l
_x, _y, _z, _g, _m = xstream, ystream, zstream, greads, gmfma
xstream = lambda p: filt(_x(p)); ystream = lambda p: filt(_y(p)); zstream = lambda p: filt(_z(p)); greads = lambda: filt(_g()); gmfma = lambda p: filt(_m(p))
c += merge(head(0), sc)
for p in range(3):
    c += merge(xstream(p), ystream(p), zstream(p))
    c += greads()
    if p == 0:
        e("s_cmp_lt_u32 s8, 4"); e("s_cbranch_scc1 L_ut0")
        e(";@opt"); c += utrans(); e(";@endopt")
        e("L_ut0:")
    if p < 2:
        hd = head(p + 1)
        c += hd[:8]
        c += merge(hd[8:], gmfma(p))
    else:
        e("s_cmp_ge_u32 s8, 4"); e("s_cbranch_scc1 L_ut2")
        e(";@opt"); c += utrans(); e(";@endopt")
        e("L_ut2:")
        c += gmfma(p)
    stamp()
e("s_setprio 2")
AD = lambda m: 4 * m
KS = {}
for i, d in enumerate((2, 3, 4)): KS[("A", d)] = 68 + 8 * i; KS[("B", d)] = 72 + 8 * i
for i, d in enumerate((4, 5, 6, 7)): KS[("C", d)] = 92 + 4 * i
ACC = lambda t: 108 + 4 * t
RING = 140; NR = 8; TB = 172
frs = []
for cp in range(8):
    frs.append((cp, 0, 448 + 512 * cp))
    if cp < 6: frs.append((cp, "2", 432 + 512 * cp))
    for m0 in range(1, 8): frs.append((cp, m0, 448 + 512 * cp - 64 * m0))
fidx = {(a, b): n for n, (a, b, _) in enumerate(frs)}
def fread(n): return f"ds_read_b128 {v4(RING + 4 * (n % NR))}, v{vU} offset:{frs[n][2]}"
Z = 188
for r in range(4): e(f"v_mov_b32 v{Z+r}, 0")
e(f"ds_write_b128 v{vZ1}, {v4(Z)}")
e(f"ds_write_b128 v{vZ}, {v4(Z)}")
a = lambda r: KA + r
e(f"v_fma_f32 v{a(0)}, v{a(0)}, v{vF}, v{vDv}")
for r in range(1, 13): e(f"v_mul_f32 v{a(r)}, v{vF}, v{a(r)}")
for j in range(4): e(f"v_cvt_pk_bf16_f32 v{172+j}, v{a(7-2*j)}, v{a(6-2*j)}")
e(f"ds_write_b128 v{vDW}, {v4(172)}")
for j in range(4): e(f"v_cvt_pk_bf16_f32 v{176+j}, v{a(8-2*j)}, v{a(7-2*j)}")
e(f"ds_write_b128 v{vDW}, {v4(176)} offset:{KO}")
e(f"v_cvt_pk_bf16_f32 v182, 0, v{a(8)}")
e(f"v_cvt_pk_bf16_f32 v183, v{a(8)}, v{a(8)}")
e(f"v_cvt_pk_bf16_f32 v184, v{a(0)}, 0")
e(f"v_mov_b32 v186, s9")
e("s_mov_b64 exec, 1")
e(f"ds_write_b32 v186, v184 offset:{KO + 2*544}")
e("s_mov_b32 exec_lo, 0"); e("s_mov_b32 exec_hi, 0x80000000")
e(f"ds_write_b64 v186, {v2(182)} offset:{2*28}")
e(f"ds_write_b32 v186, v183 offset:{KO + 2*30}")
e("s_mov_b64 exec, -1")
e(f"v_cvt_pk_bf16_f32 v180, v{a(9)}, v{a(10)}")
e(f"v_cvt_pk_bf16_f32 v181, v{a(11)}, v{a(12)}")
e(f"v_cvt_pk_bf16_f32 v185, v{a(12)}, v{a(12)}")
def aread(m):
    off = 16 * (16 - m); base = vKd
    if off >= 128: off -= 128; base = vKd2
    return [f"ds_read2_b32 {v2(AD(m))}, v{base} offset0:{off} offset1:{off+1}", f"ds_read2_b32 {v2(AD(m)+2)}, v{base} offset0:{off+2} offset1:{off+3}"]
e("v_readlane_b32 s59, v185, 31")
e("L_poll:")
e(f"ds_read_b32 v{vRT}, v{vCN} offset:32")
e("s_waitcnt lgkmcnt(0)")
e(f"v_readfirstlane_b32 s12, v{vRT}")
e("s_cmp_ge_u32 s12, 8")
e("s_cbranch_scc1 L_pollE")
e("s_sleep 2")
e("s_branch L_poll")
e("L_pollE:")
for n in range(2): e(fread(n))
for m in (0, 8, 16): c += aread(m)
for n in range(2, NR): e(fread(n))
for m in (1, 9): c += aread(m)
for disp in (0, SO + 2):
    e(f"ds_write_b16 v{vS1}, v180 offset:{disp+32}")
    e(f"ds_write_b16_d16_hi v{vS1}, v180 offset:{disp}")
    e(f"ds_write_b16 v{vS2}, v181 offset:{disp+32}")
    e(f"ds_write_b16_d16_hi v{vS2}, v181 offset:{disp}")
for j in range(4): e(f"v_and_b32 v{ASP+j}, s59, v{ASP+j}")
late = []
for m in (2, 10, 3, 11, 4, 12, 5, 13, 6, 14, 7, 15): late += aread(m)
def sread(key):
    t, d = key
    b0, b1, top = {"A": (0, 128, 4), "B": (256, 384, 4), "C": (512, 672, 7)}[t]
    o0 = b0 // 4 + 8 * (top - d); o1 = b1 // 4 + 8 * (top - d)
    return [f"ds_read2_b32 {v2(KS[key])}, v{vKs} offset0:{o0} offset1:{o0+1}", f"ds_read2_b32 {v2(KS[key]+2)}, v{vKs} offset0:{o1} offset1:{o1+1}"]
for key in KS: late += sread(key)
stamp()
touched = set()
def mf(t, A, B):
    C = v4(ACC(t)) if t in touched else "0"
    touched.add(t)
    return f"v_mfma_f32_16x16x32_bf16 {v4(ACC(t))}, {v4(A)}, {v4(B)}, {C}"
def outw(t):
    r = YC + 2 * (t & 1)
    return [f"v_cvt_pk_bf16_f32 v{r}, v{ACC(t)}, v{ACC(t)+1}", f"v_cvt_pk_bf16_f32 v{r+1}, v{ACC(t)+2}, v{ACC(t)+3}",
            f"ds_write_b64 v{vYW}, {v2(r)} offset:{512*t}", "s_mov_b64 exec, 1", f"ds_add_rtn_u32 v{vRT}, v{vCN}, v{vOne} offset:{4*t}", "s_mov_b64 exec, -1"]
def chk(t):
    land = [TRD, ACC(t), 196, 240]
    s = [f"v_readfirstlane_b32 s12, v{vRT}", "s_cmp_lg_u32 s12, 7", f"s_cbranch_scc1 L_ns{t}", ";@opt"]
    for g in range(4):
        s.append(f"ds_read_b64_tr_b16 {v2(land[g])}, v{vTR} offset:{512*t + 128*g}")
        s.append(f"ds_read_b64_tr_b16 {v2(land[g]+2)}, v{vTR} offset:{512*t + 128*g + 4*SWS}")
    for g in range(4):
        s.append(f"s_add_u32 s15, s14, {(256*t + 4*g)*2560}")
        s.append(f"s_waitcnt lgkmcnt({6-2*g})")
        s.append(f"buffer_store_dwordx4 {v4(land[g])}, v{vO}, s[40:43], s15 offen")
    s += [";@endopt", f"L_ns{t}:"]
    return s
pend = []
for cp in range(8):
    ms = []
    F = lambda key: RING + 4 * (fidx[key] % NR)
    b1 = F((cp, 0))
    if cp < 6:
        b2 = F((cp, "2"))
        box = [(0, b1, (12,1)), (1, b1, (8,2)), (2, b2, (12,1)), (3, b2, (8,2))]
        if cp < 4: box += [(4, b1, (8,3)), (5, b2, (8,4))]
        for k, (t, fr, bd) in enumerate(box):
            ms.append([f"v_mfma_f32_16x16x32_bf16 {v4(TB+4*t)}, {v4(fr)}, {v4(BND[bd])}, 0", fidx[(cp, "2")] if k == len(box) - 1 else None])
    ms.append([mf(cp, AD(0), b1), None])
    if cp < 7: ms.append([mf(cp + 1, AD(8), b1), None])
    if cp < 6: ms.append([mf(cp + 2, AD(16), b1), None])
    if cp < 4: ms.append([mf(cp + 4, ASP, b1), None])
    ms[-1][1] = fidx[(cp, 0)]
    nhead = len(ms)
    for m0 in range(1, 8):
        f = F((cp, m0))
        ms.append([mf(cp, AD(m0), f), None])
        if cp < 7: ms.append([mf(cp + 1, AD(8 + m0), f), None])
        ms[-1][1] = fidx[(cp, m0)]
    ndense = len(ms)
    cv = []
    if cp < 6:
        for pr in range(3 if cp < 4 else 2):
            t = TB + 8 * pr
            for j in range(4): cv.append(f"v_cvt_pk_bf16_f32 v{t+j}, v{t+2*j}, v{t+2*j+1}")
        for d in (2, 3, 4):
            if cp + d < 8:
                ms.append([mf(cp + d, TB, KS[("A", d)]), None]);
        for d in (2, 3, 4):
            if cp + d < 8:
                ms.append([mf(cp + d, TB + 8, KS[("B", d)]), None])
        if cp < 4:
            for d in (4, 5, 6, 7):
                if cp + d < 8: ms.append([mf(cp + d, TB + 16, KS[("C", d)]), None])
    side = {k: [] for k in range(len(ms))}
    pos = 1
    for grp in pend:
        side[min(pos, len(ms) - 1)] += grp; pos += 6
    pend = []
    if cp == 0:
        per = 4
        k = 0
        while late:
            side[k] += late[:per]; late = late[per:]; k += 1
    k = nhead + 1
    for x in cv:
        side[min(k, ndense - 2)].append(x); k += 1
    for k, (txt, rel) in enumerate(ms):
        e(txt)
        if rel is not None and rel + NR < len(frs): e(fread(rel + NR))
        c += side[k]
    pend.append(outw(cp)); pend.append(chk(cp))
    if cp == 2: e("s_setprio 1")
    if cp == 4: e("s_setprio 0")
stamp()
for grp in pend: c += grp
if STAMP:
    stamp()
    e("s_waitcnt vmcnt(0)")
    stamp()
    e("s_memrealtime s[98:99]"); e("s_waitcnt lgkmcnt(0)")
    e("s_lshl_b32 s12, s2, 3"); e("s_add_u32 s12, s12, s8"); e("s_lshl_b32 s12, s12, 7")
    e("v_mov_b32 v0, s12")
    for k in (14, 15):
        e(f"v_mov_b32 v2, s{96+2*(k-14)}"); e(f"v_mov_b32 v3, s{97+2*(k-14)}")
        e(f"global_store_dwordx2 v0, v[2:3], s[66:67] offset:{8*k}")
    for k in range(nstamp[0]):
        e(f"v_mov_b32 v2, s{70+2*k}"); e(f"v_mov_b32 v3, s{71+2*k}")
        e(f"global_store_dwordx2 v0, v[2:3], s[66:67] offset:{8*k}")
e("L_end:")

def add_waits(lines):
    out = []; q = []; marks = {}
    issued = 0; done = 0
    dests = []
    opt = False
    for t in lines:
        if t.startswith(";@opt"): opt = True; continue
        if t.startswith(";@endopt"): opt = False; continue
        if opt: out.append(t); continue
        if t.startswith(";@mark"): marks[t.split()[1]] = issued; continue
        if t.startswith(";@wait"):
            k = marks[t.split()[1]]
            if k > done:
                out.append(f"s_waitcnt lgkmcnt({min(15, issued - k)})"); done = max(done, issued - min(15, issued - k))
            continue
        i = Ins(t)
        if i.kind == "label": out.append(t); continue
        if i.op == "s_waitcnt" and "lgkmcnt(0)" in t: done = issued
        needk = 0
        touch = i.r | i.w
        for k in range(done, issued):
            if dests[k] & touch and not (i.kind == "ds" and not (dests[k] & i.r)): needk = k + 1
        if needk > done:
            n = min(15, issued - needk)
            out.append(f"s_waitcnt lgkmcnt({n})"); done = issued - n
        out.append(t)
        if i.kind == "ds": dests.append(i.w); issued += 1
    return out
c = add_waits(c)
body, nn = fix_hazards(c)
hdr = open("cdna_kernels/" + NAME + ".s.ref").read().split("\n")
hdr = [l for l in hdr if l.startswith(";") and "@launch" not in l]
src = "\n".join(hdr) + f"\n; @launch grid=(160,1,1) block=(512,1,1) lds={LDS}\n"
src += f""".amdgcn_target "amdgcn-amd-amdhsa--gfx950"
.text
.globl {NAME}_kernel
.p2align 8
.type {NAME}_kernel,@function
{NAME}_kernel:
""" + "\n".join(body) + f"""
    s_endpgm
.section .rodata,"a"
.p2align 6
.amdhsa_kernel {NAME}_kernel
  .amdhsa_next_free_vgpr 256
  .amdhsa_next_free_sgpr 102
  .amdhsa_accum_offset 256
  .amdhsa_group_segment_fixed_size 0
  .amdhsa_kernarg_size 152
  .amdhsa_user_sgpr_count 2
  .amdhsa_user_sgpr_kernarg_segment_ptr 1
  .amdhsa_system_sgpr_workgroup_id_x 1
  .amdhsa_ieee_mode 0
.end_amdhsa_kernel
"""
out = [a for a in sys.argv[1:] if not a.startswith("--")]
path = out[0] if out else "cdna_kernels/" + NAME + ".s"
open(path, "w").write(src)
print("wrote", path, "instrs", len(body), "nops inserted", nn)
```

```python
import re
TRANS = ("v_exp_f32", "v_log_f32", "v_rcp_f32", "v_rsq_f32", "v_sqrt_f32", "v_sin_f32", "v_cos_f32")
REG = re.compile(r"\b([vsa])(\d+)\b|\b([vsa])\[(\d+):(\d+)\]|\b(vcc|exec|m0|scc)\b")

def regs(tok):
    out = set()
    for m in REG.finditer(tok):
        if m.group(1): out.add((m.group(1), int(m.group(2))))
        elif m.group(3):
            for i in range(int(m.group(4)), int(m.group(5)) + 1): out.add((m.group(3), i))
        else: out.add((m.group(6), 0))
    return out

class Ins:
    def __init__(self, text):
        self.text = text
        t = text.split(";")[0].strip()
        self.label = t.endswith(":") or t.startswith(".") or t == ""
        if self.label:
            self.op = ""; self.w = set(); self.r = set(); self.kind = "label"; return
        parts = t.split(None, 1)
        self.op = op = parts[0]
        rest = parts[1] if len(parts) > 1 else ""
        ops = []; cur = ""; d = 0
        for ch in rest:
            if ch == "[": d += 1
            if ch == "]": d -= 1
            if ch == "," and d == 0: ops.append(cur.strip()); cur = ""
            else: cur += ch
        if cur.strip(): ops.append(cur.strip())
        if ops:
            last = ops[-1].split()
            ops[-1] = last[0]
            self.mods = " ".join(last[1:])
        else: self.mods = ""
        self.ops = ops
        R = [regs(o) for o in ops]
        U = lambda xs: set().union(*xs) if xs else set()
        self.passes = 0
        if op.startswith("v_mfma"):
            self.kind = "mfma"; self.w = R[0]; self.r = U(R[1:]); self.ab = R[1] | R[2]; self.c = R[3]
            self.passes = 8 if "32x32x16" in op else 4
        elif op.startswith("v_"):
            self.kind = "valu"; self.w = R[0]; self.r = U(R[1:])
            if op.startswith(("v_fmac", "v_pk_fmac", "v_writelane")) or "dpp" in op or "sdwa" in op: self.r |= R[0]
            if op.startswith("v_cndmask") and len(ops) == 3: self.r.add(("vcc", 0))
            if op.startswith("v_permlane"): self.w = R[0] | R[1]; self.r = R[0] | R[1]
        elif op.startswith("ds_"):
            self.kind = "ds"
            if op.startswith(("ds_read", "ds_bpermute", "ds_swizzle")) or "rtn" in op: self.w = R[0]; self.r = U(R[1:])
            else: self.w = set(); self.r = U(R)
            if "addtid" in op: self.r.add(("m0", 0))
        elif op.startswith(("buffer_", "global_")):
            self.kind = "vmem"
            if "load" in op: self.w = R[0]; self.r = U(R[1:])
            else: self.w = set(); self.r = U(R)
        elif op.startswith("s_"):
            self.kind = "salu"
            if op.startswith(("s_cmp", "s_waitcnt", "s_nop", "s_barrier", "s_cbranch", "s_branch", "s_endpgm", "s_setprio", "s_sleep", "s_bitcmp")): self.w = set(); self.r = U(R)
            else: self.w = R[0] if R else set(); self.r = U(R[1:])
        else:
            raise ValueError(text)
        self.trans = op.replace("_e64", "").replace("_e32", "") in TRANS
        self.pk = op.startswith("v_pk_") or "sdwa" in op or op.startswith("v_fma_mix")
        self.dpp = "dpp" in op
        self.states = 1
        if op == "s_nop": self.states = int(ops[0], 0) + 1

def need(p, c):
    n = 0
    vw = {x for x in p.w if x[0] in "va"}
    sw = {x for x in p.w if x[0] in ("s", "vcc")}
    if p.kind == "valu":
        if vw & c.r:
            if p.trans and not (c.kind == "valu" and c.trans): n = max(n, 1)
            if p.pk and c.kind == "valu": n = max(n, 1)
            if c.kind == "mfma": n = max(n, 2)
            if c.kind == "valu" and c.dpp: n = max(n, 2)
            if c.op.startswith(("v_readlane", "v_readfirstlane")): n = max(n, 1)
            if c.op.startswith("v_permlane"): n = max(n, 2)
        if p.pk and c.kind == "valu" and (vw & c.w): n = max(n, 1)
        if sw & c.r:
            if c.kind == "valu": n = max(n, 4 if c.op.startswith(("v_readlane", "v_writelane")) else 2)
            if c.kind == "vmem": n = max(n, 5)
            if c.kind == "salu": n = max(n, 1)
    if p.kind == "mfma":
        big = {4: 8, 8: 12}[p.passes]
        if c.kind == "mfma":
            if p.w & c.ab: n = max(n, big)
            if p.w & c.c and not (p.w == c.c and p.passes == c.passes): n = max(n, big - 2)
            if (p.w & c.w) and not (p.w == c.c): n = max(n, big)
        elif c.kind in ("valu", "ds", "vmem"):
            if p.w & (c.r | c.w): n = max(n, big)
            if c.kind == "valu" and (p.c & c.w): n = max(n, p.passes - 1)
    if p.kind == "salu" and ("m0", 0) in p.w and ("m0", 0) in c.r: n = max(n, 1)
    if p.kind == "vmem" and "store" in p.op and ("x4" in p.op or "x3" in p.op):
        if regs(p.ops[0] if p.op.startswith("buffer") else p.ops[1]) & c.w: n = max(n, 2)
    return n

def fix_hazards(lines):
    out = []
    nn = 0
    region = 0; nreg = 0
    for text in lines:
        if text.startswith(";@opt"): nreg += 1; region = nreg; continue
        if text.startswith(";@endopt"): region = 0; continue
        c = Ins(text); c.region = region
        if c.kind != "label":
            req = 0; dist = 0; dist_in = 0; cur = None
            for p in reversed(out):
                if p.kind == "label": continue
                k = need(p, c)
                skippable = p.region != 0 and p.region != c.region
                if skippable:
                    if cur != p.region: cur = p.region; dist_in = dist
                    if k > dist_in: req = max(req, k - dist_in)
                    dist_in += p.states
                else:
                    if k > dist: req = max(req, k - dist)
                    dist += p.states
                if dist > 20: break
            if req > 0:
                n = Ins(f"s_nop {req-1}"); n.region = region
                out.append(n); nn += 1
        out.append(c)
    return [("" if i.kind == "label" and i.text.endswith(":") else "    ") + i.text for i in out], nn

def merge(*streams):
    streams = [s for s in streams if s]
    pos = [0] * len(streams)
    out = []
    tot = sum(len(s) for s in streams)
    for _ in range(tot):
        best = min((i for i in range(len(streams)) if pos[i] < len(streams[i])), key=lambda i: (pos[i] + 0.5) / len(streams[i]))
        out.append(streams[best][pos[best]]); pos[best] += 1
    return out
```

```python
import sys, re
from asmlib import *
NAME = "concat_heads__ssm_conv_s4d__ssm_conv_s4__prompt"
STAMP = "--stamp" in sys.argv
SWS = 14912; ROW = 272; U0 = 8 * SWS; UST = 4576; LDS = U0 + 8 * UST
KO = 1216; SE = 2368; SO = 832; YB = 4096
ELY = [0,1,2,3,262,264, 260,1032,1288,1544,776,258,516,772,520,1800, 4,5,6,7,8,256]
HI0 = list(range(9)) + [516, 772, 520, 776] + [776] * 3
HI1 = [256 + x for x in [0,0,2,4,4,4,6,8,8]] + [1032,1288,1544,1800] + [1800] * 3
SLOT = [ELY.index((HI1 if (r >> 2) & 1 else HI0)[(r & 3) + 4 * (r >> 3)]) for r in range(32)]

BND = {(12,1): 200, (8,2): 204, (8,3): 208, (8,4): 212}; ASP = 216
vU, vKd, vKd2, vKs, vYW, vTR, vO, vZ, vS1, vS2, vDW, vXr, vYr, vUW, vUL, vP, vDv, vF = range(220, 238)
vQ = 241; vZ1 = 242; vCN = 252; vOne = 253; vRT = 254
TRD = 244; YC = 248
def v4(r): return f"v[{r}:{r+3}]"
def v2(r): return f"v[{r}:{r+1}]"
PRM = lambda a, p: 2 + 3 * a + p
AR = lambda p: 22 + 2 * p
AI = lambda p: 23 + 2 * p
CR = lambda p: 28 + 2 * p
CI = lambda p: 29 + 2 * p
CNT = LDS; LDS += 64
UD = 36; KA = 52; XF = 68; YF = 100; XK = 132

c = []
e = c.append
nstamp = [0]
def stamp():
    if STAMP:
        k = nstamp[0]; nstamp[0] += 1
        e(f"s_memtime s[{70+2*k}:{71+2*k}]")

e("s_cmp_ge_u32 s2, 160")
e("s_cbranch_scc1 L_end")
if STAMP:
    e("s_memtime s[70:71]"); nstamp[0] = 1
    e("s_memrealtime s[96:97]")
e("s_getpc_b64 s[62:63]")
e("s_and_b32 s3, s2, 7")
e("s_mul_i32 s3, s3, 20")
e("s_lshr_b32 s4, s2, 3")
e("s_add_u32 s3, s3, s4")
e("s_cmp_ge_u32 s3, 80")
e("s_cselect_b32 s5, 56, 0")
e("s_cselect_b32 s6, 80, 0")
e("s_load_dwordx16 s[16:31], s[0:1], s5")
e("s_load_dwordx4 s[32:35], s[0:1], 120")
if STAMP: e("s_load_dwordx2 s[66:67], s[0:1], 144")
e("s_sub_u32 s4, s3, s6")
e("v_lshrrev_b32 v2, 6, v0")
e("v_and_b32 v1, 63, v0")
e("v_readfirstlane_b32 s8, v2")
if "--nopf" not in sys.argv:
    e("s_cmp_lg_u32 s8, 7"); e("s_cbranch_scc1 L_nocp")
    e("s_andn2_b32 s12, s2, 7")
    e("v_and_b32 v3, 7, v1")
    e("v_add_u32 v3, s12, v3")
    e("v_lshlrev_b32 v3, 7, v3")
    e("v_min_u32 v3, CODE_END_OFF, v3")
    e("global_load_dword v255, v3, s[62:63]")
    e("L_nocp:")
e("s_lshl_b32 s11, s4, 3")
e("s_add_u32 s11, s11, s8")
e("s_mul_i32 s12, s11, 384")
e("s_lshl_b32 s13, s11, 1")
e(f"v_lshl_add_u32 v{vP}, v1, 1, s12")
e(f"v_mov_b32 v{vQ}, s13")
e("s_mov_b32 s10, s8")
e("s_mul_i32 s12, s10, %d" % (256 * 1280))
e("s_lshl_b32 s13, s4, 4")
e("s_add_u32 s12, s12, s13")
e(f"v_mul_u32_u24 v{vUL}, 5120, v1")
e(f"v_add_u32 v{vUL}, s12, v{vUL}")
for r in range(2, 22): e(f"v_mov_b32 v{r}, 0")
e("s_mul_i32 s9, s8, %d" % SWS)
e("s_mov_b32 s38, %d" % (2048 * 1280))
e("s_mov_b32 s39, 0x20000")
e("s_mov_b32 s42, %d" % (2048 * 2560))
e("s_mov_b32 s43, 0x20000")
e("s_cmp_lg_u32 s5, 0")
e("s_waitcnt lgkmcnt(0)")
e("s_cbranch_scc1 L_ldB")
e(f"global_load_short_d16_hi v20, v{vQ}, s[26:27]")
for p in range(3):
    for a in range(4): e(f"global_load_short_d16_hi v{PRM(a,p)}, v{vP}, s[{18+2*a}:{19+2*a}] offset:{128*p}")
e(f"global_load_short_d16_hi v21, v{vQ}, s[28:29]")
e("s_branch L_ldE")
e("L_ldB:")
e(f"global_load_short_d16_hi v20, v{vQ}, s[30:31]")
for p in range(3):
    for a in range(6): e(f"global_load_short_d16_hi v{PRM(a,p)}, v{vP}, s[{18+2*a}:{19+2*a}] offset:{128*p}")
e(f"global_load_short_d16_hi v21, v{vQ}, s[32:33]")
e("L_ldE:")
e("s_mov_b32 s36, s16"); e("s_mov_b32 s37, s17")
e("s_mov_b32 s40, s34"); e("s_mov_b32 s41, s35")
def uloads(rng=range(4)):
    for i in rng: e(f"buffer_load_dwordx4 {v4(UD+4*i)}, v{vUL}, s[36:39], 0 offen offset:{1280*i}")
e(f"v_lshlrev_b32 v140, 2, v1")
e(f"v_add_u32 v140, {CNT}, v140")
e("v_mov_b32 v141, 0")
e("s_mov_b64 exec, 0xffff")
e("ds_write_b32 v140, v141")
e("s_mov_b64 exec, -1")
e("s_waitcnt lgkmcnt(0)")
e("s_cmp_lg_u32 s8, 4")
e("s_cbranch_scc1 L_npf")
e("v_lshrrev_b32 v140, 5, v1"); e("v_lshlrev_b32 v140, 8, v140")
e("v_and_or_b32 v140, v1, 31, v140")
e("v_mul_u32_u24 v140, 1280, v140")
e("s_and_b32 s12, s3, 7"); e("s_mul_i32 s12, s12, %d" % (32 * 1280)); e("s_add_u32 s12, s12, s13")
e("L_npf:")
e("s_cmp_lg_u32 s8, 4")
e("s_barrier")
e("s_cbranch_scc1 L_npf2")
for i in range(4):
    e(f"buffer_load_dword v255, v140, s[36:39], s12 offen")
    if i < 3: e("s_add_u32 s12, s12, %d" % (512 * 1280))
e("L_npf2:")
e("s_mov_b32 m0, s9")
e("s_mov_b32 s44, 0x41000000")
e("s_mov_b32 s45, 0x43800000")
e("s_mov_b32 s46, 0x3fb8aa3b")
e("s_mov_b32 s47, 0xffff0000")
e("s_mov_b32 s57, 0x05040100"); e("s_mov_b32 s58, 0x07060302")
T = 140
e(f"v_and_b32 v{T}, 15, v1")
e(f"v_lshrrev_b32 v{T+1}, 4, v1")
e(f"v_and_b32 v{T+2}, 31, v1")
e(f"v_lshrrev_b32 v{T+3}, 5, v1")
e("s_cmp_ge_u32 s8, 4"); e("s_cbranch_scc1 L_nou")
e(";@opt"); uloads((0, 1)); e(";@endopt")
e("L_nou:")
e(f"v_mov_b32 v{XK}, 0x3c00")
e(f"ds_write_addtid_b32 v{XK} offset:0")
e("s_mul_i32 s12, s8, %d" % UST)
e("s_add_u32 s12, s12, %d" % U0)
e(f"v_lshl_add_u32 v{T+4}, v1, 3, s12")
e(f"v_mov_b32 v{T+6}, 0"); e(f"v_mov_b32 v{T+7}, 0")
e("s_mov_b32 exec_hi, 0x0fffffff")
e(f"ds_write_b64 v{T+4}, {v2(T+6)}")
e("s_mov_b32 exec_hi, -1")
e(f"v_lshl_add_u32 v{vU}, v{T}, 5, s12")
e(f"v_lshl_add_u32 v{vU}, v{T+1}, 4, v{vU}")
e("s_lshl_b32 s12, s10, 9")
e("s_add_u32 s12, s12, %d" % (U0 + 480))
e(f"v_lshl_add_u32 v{vUW}, v1, 3, s12")
e(f"v_mul_u32_u24 v{vXr}, {ROW}, v{T+2}")
e(f"v_lshl_add_u32 v{T+4}, v{T+3}, 4, s9")
e(f"v_add_u32 v{vXr}, v{vXr}, v{T+4}")
def nib(lo): return sum((SLOT[lo + k] & 15) << (4 * k) for k in range(8))
hib = sum(((SLOT[k] >> 4) & 1) << k for k in range(32))
e(f"v_mov_b32 v{T+8}, 0x{nib(0):08x}"); e(f"v_mov_b32 v{T+9}, 0x{nib(8):08x}")
e(f"v_mov_b32 v{T+10}, 0x{nib(16):08x}"); e(f"v_mov_b32 v{T+11}, 0x{nib(24):08x}")
e(f"v_cmp_lt_u32 vcc, 15, v{T+2}")
e(f"v_cndmask_b32 v{T+8}, v{T+8}, v{T+10}, vcc")
e(f"v_cndmask_b32 v{T+9}, v{T+9}, v{T+11}, vcc")
e(f"v_lshlrev_b32 v{T+10}, 2, v{T}")
e(f"v_lshrrev_b64 {v2(T+8)}, v{T+10}, {v2(T+8)}")
e(f"v_and_b32 v{T+8}, 15, v{T+8}")
e(f"v_mov_b32 v{T+9}, 0x{hib:08x}")
e(f"v_bfe_u32 v{T+9}, v{T+9}, v{T+2}, 1")
e(f"v_lshl_or_b32 v{T+8}, v{T+9}, 4, v{T+8}")
e(f"v_add_u32 v{T+8}, 32, v{T+8}")
e(f"v_mul_u32_u24 v{vYr}, {ROW}, v{T+8}")
e(f"v_add_u32 v{vYr}, v{vYr}, v{T+4}")
e(f"v_and_b32 v{T+8}, 1, v{T}")
e(f"v_add_u32 v{T+9}, v{T}, v{T+8}")
e(f"v_sub_u32 v{T+9}, 16, v{T+9}")
e(f"v_lshl_add_u32 v{T+9}, v{T+9}, 1, s9")
e(f"v_xor_b32 v{T+8}, 1, v{T+8}")
e(f"v_mul_u32_u24 v{T+10}, {KO}, v{T+8}")
e(f"v_lshl_add_u32 v{vKd}, v{T+1}, 4, v{T+9}")
e(f"v_add_u32 v{vKd}, v{vKd}, v{T+10}")
e(f"v_add_u32 v{vKd2}, 512, v{vKd}")
e(f"v_mul_u32_u24 v{T+10}, {SO}, v{T+8}")
e(f"v_lshl_add_u32 v{vKs}, v{T+1}, 3, v{T+9}")
e(f"v_add_u32 v{vKs}, v{vKs}, v{T+10}")
e(f"v_add_u32 v{vKs}, {SE}, v{vKs}")
e(f"s_add_u32 s12, s9, {YB}")
e(f"v_lshl_add_u32 v{vYW}, v1, 3, s12")
e(f"v_lshlrev_b32 v{T+8}, 4, v1")
e("s_add_u32 s12, s9, 1072")
e(f"v_sub_u32 v{vDW}, s12, v{T+8}")
e("s_add_u32 s12, s9, 3008")
e(f"v_add_u32 v{vZ1}, s12, v{T+8}")
e(f"v_add_u32 v{vZ}, 2304, v{T+8}")
e(f"v_add_u32 v{T+9}, {1088-16*44}, v{T+8}")
e(f"v_cmp_lt_u32 vcc, 43, v1")
e(f"v_cndmask_b32 v{vZ}, v{vZ}, v{T+9}, vcc")
e(f"v_and_b32 v{T+9}, 48, v{T+8}")
e(f"v_cmp_lt_u32 vcc, 55, v1")
e(f"v_cndmask_b32 v{vZ}, v{vZ}, v{T+9}, vcc")
e(f"v_add_u32 v{vZ}, s9, v{vZ}")
e(f"v_and_b32 v{T+8}, 1, v1")
e(f"v_and_b32 v{T+9}, 30, v1")
e(f"v_lshlrev_b32 v{T+10}, 8, v{T+8}")
e(f"v_add_u32 v{T+10}, 62, v{T+10}")
e(f"v_mul_u32_u24 v{T+11}, 160, v{T+8}")
e(f"v_add_u32 v{T+11}, {512+94}, v{T+11}")
e(f"v_cmp_lt_u32 vcc, 31, v1")
e(f"v_cndmask_b32 v{T+10}, v{T+10}, v{T+11}, vcc")
e(f"v_sub_u32 v{T+10}, v{T+10}, v{T+9}")
e(f"s_add_u32 s12, s9, {SE}")
e(f"v_add_u32 v{vS1}, s12, v{T+10}")
e(f"v_mov_b32 v{T+10}, 128"); e(f"v_mov_b32 v{T+11}, -64")
e(f"v_cndmask_b32 v{T+10}, v{T+10}, v{T+11}, vcc")
e(f"v_add_u32 v{vS2}, v{vS1}, v{T+10}")
e(f"v_bfe_u32 v{T+8}, v1, 2, 2")
e(f"v_mul_u32_u24 v{T+8}, {SWS}, v{T+8}")
e(f"v_and_b32 v{T+9}, 3, v1")
e(f"v_lshl_add_u32 v{T+10}, v{T+1}, 2, v{T+9}")
e(f"v_lshl_add_u32 v{T+8}, v{T+10}, 3, v{T+8}")
e("s_and_b32 s12, s8, 3"); e("s_lshl_b32 s13, s12, 7"); e(f"s_add_u32 s13, s13, {YB}")
e(f"v_add_u32 v{vTR}, s13, v{T+8}")
e("s_mul_i32 s15, s12, 10240")
e(f"v_lshrrev_b32 v{T+8}, 2, v1")
e(f"v_lshl_add_u32 v{T+8}, v{T+8}, 4, v{T+9}")
e(f"v_mov_b32 v{vCN}, {CNT}"); e(f"v_mov_b32 v{vOne}, 1")
e("s_and_b32 s12, s8, 4"); e(f"v_add_u32 v{vQ}, s12, v{vCN}")
e(f"v_mul_u32_u24 v{vO}, 2560, v{T+8}")
e("s_lshl_b32 s14, s3, 4")
e("s_add_u32 s14, s14, s15")
e(f"v_lshlrev_b32 v{T+8}, 3, v{T+1}")
e(f"v_sub_u32 v{T+8}, v{T+8}, v{T}")
e(f"v_add_u32 v{T+8}, 15, v{T+8}")
e(f"v_min_u32 v{T+8}, 31, v{T+8}")
e("s_mov_b32 s48, 0x3f80"); e("s_mov_b32 s49, 0x3f800000"); e("s_mov_b32 s52, 0xffff")
def bandgen(base, M, lo, hi):
    e(f"v_mov_b32 v{T+9}, 0x{M:x}")
    e(f"v_lshrrev_b32 v{T+9}, v{T+8}, v{T+9}")
    for j in range(4):
        e(f"v_bfe_i32 v{T+10}, v{T+9}, {2*j}, 1")
        e(f"v_bfe_i32 v{T+11}, v{T+9}, {2*j+1}, 1")
        e(f"v_and_b32 v{T+10}, {lo}, v{T+10}")
        e(f"v_and_or_b32 v{base+j}, v{T+11}, {hi}, v{T+10}")
for (c0, h), base in BND.items(): bandgen(base, ((1 << (2*h+1)) - 1) << (c0 - h + 15), "s48", "s49")
bandgen(ASP, 3 << (12 + 15), "s52", "s47")
stamp()
e("s_waitcnt vmcnt(4)")
e("s_cmp_eq_u32 s8, 4")
e("s_cbranch_scc1 L_w0")
e("s_waitcnt vmcnt(2)")
e("s_cmp_lt_u32 s8, 4")
e("s_cbranch_scc1 L_w0")
e("s_waitcnt vmcnt(0)")
e("L_w0:")
stamp()
e("v_mul_f32 v20, s46, v20")
e("v_exp_f32 v20, v20")
e(f"v_cmp_eq_u32 vcc, 0, v1")
e("v_cvt_pk_bf16_f32 v20, v20, v20")
e(f"v_cndmask_b32 v{vDv}, 0, v21, vcc")
e("v_and_b32 v20, s47, v20")
e("v_mul_f32 v34, s46, v20")
e("v_mul_f32 v35, 0.15915494, v20")
e("s_cmp_lg_u32 s5, 0")
e("s_cbranch_scc1 L_prB")
for p in range(3): e(f"v_mul_f32 v{PRM(0,p)}, s46, v{PRM(0,p)}")
for p in range(3): e(f"v_exp_f32 v{PRM(0,p)}, v{PRM(0,p)}")
for p in range(3): e(f"v_mul_f32 v{AI(p)}, v35, v{PRM(1,p)}")
for p in range(3): e(f"v_cvt_pk_bf16_f32 v{PRM(0,p)}, v{PRM(0,p)}, v{PRM(0,p)}")
e(f"v_max3_f32 v{T}, |v{PRM(2,0)}|, |v{PRM(2,1)}|, |v{PRM(2,2)}|")
e(f"v_max3_f32 v{T+1}, |v{PRM(3,0)}|, |v{PRM(3,1)}|, |v{PRM(3,2)}|")
for p in range(3): e(f"v_and_b32 v{PRM(0,p)}, s47, v{PRM(0,p)}")
e(f"v_max_f32 v{T}, v{T}, v{T+1}")
for p in range(3): e(f"v_mul_f32_e64 v{AR(p)}, -v34, v{PRM(0,p)}")
for p in range(3):
    e(f"v_mov_b32 v{CR(p)}, v{PRM(2,p)}"); e(f"v_mov_b32 v{CI(p)}, v{PRM(3,p)}")
e(f"v_add_f32 v{vF}, v20, v20")
e("s_branch L_prE")
e("L_prB:")
for p in range(3): e(f"v_mul_f32 v{AR(p)}, v34, v{PRM(0,p)}")
for p in range(3): e(f"v_mul_f32 v{AI(p)}, v35, v{PRM(1,p)}")
for p in range(3): e(f"v_max_f32 v{T+p}, 0, v{AR(p)}")
for p in range(3): e(f"v_mul_f32 v{T+p}, 0x44e10000, v{T+p}")
for p in range(3): e(f"v_exp_f32 v{T+p}, v{T+p}")
for p in range(3):
    e(f"v_mul_f32 v{CR(p)}, v{PRM(2,p)}, v{PRM(4,p)}")
    e(f"v_mul_f32 v{CI(p)}, v{PRM(2,p)}, v{PRM(5,p)}")
    e(f"v_fma_f32 v{CR(p)}, -v{PRM(3,p)}, v{PRM(5,p)}, v{CR(p)}")
    e(f"v_fmac_f32 v{CI(p)}, v{PRM(3,p)}, v{PRM(4,p)}")
for p in range(3): e(f"v_max_f32_e64 v{T+3+p}, |v{CR(p)}|, |v{CI(p)}|")
for p in range(3): e(f"v_mul_f32 v{T+p}, v{T+p}, v{T+3+p}")
e(f"v_max3_f32 v{T}, v{T}, v{T+1}, v{T+2}")
e(f"v_mov_b32 v{vF}, v20")
e("s_nop 0")
e("L_prE:")
e("s_nop 1")
for p in range(3): e(f"v_rndne_f32 v{T+3+p}, v{AI(p)}")
for p in range(3): e(f"v_sub_f32 v{AI(p)}, v{AI(p)}, v{T+3+p}")
sc = []
sc.append(f"v_max_f32_dpp v250, v{T}, v{T} row_ror:8 row_mask:0xf bank_mask:0xf")
for k in (4, 2, 1): sc.append(f"v_max_f32_dpp v250, v250, v250 row_ror:{k} row_mask:0xf bank_mask:0xf")
for k in range(4): sc.append(f"v_readlane_b32 s{53+k}, v250, {16*k}")
sc += ["s_max_u32 s53, s53, s54", "s_max_u32 s55, s55, s56", "s_max_u32 s53, s53, s55", "s_lshr_b32 s53, s53, 23",
       "s_max_u32 s53, s53, 16", "s_min_u32 s53, s53, 254", "s_sub_u32 s50, 266, s53", "s_min_u32 s50, s50, 254", "s_lshl_b32 s50, s50, 23", "s_sub_u32 s51, s53, 12", "s_lshl_b32 s51, s51, 23"]
for p in range(3):
    sc.append(f"v_pk_mul_f32 {v2(CR(p))}, {v2(CR(p))}, s[50:51] op_sel_hi:[1,0] neg_hi:[1,0]")
sc.append(f"v_mul_f32 v{vF}, s51, v{vF}")

YR = lambda hi: 32 + ELY.index(hi)
YK = lambda hi: 164 + ELY.index(hi)
XR = lambda i: XK + i
def cm16(lst, jobs, tmps):
    for k in range(0, len(jobs), 2):
        grp = jobs[k:k+2]
        for (d, x, y), t in zip(grp, tmps): lst.append(f"v_pk_mul_f16 v{t}, v{x}, v{y} op_sel:[0,0] op_sel_hi:[1,0]")
        for (d, x, y), t in zip(grp, tmps): lst.append(f"v_pk_fma_f16 v{d}, v{x}, v{y}, v{t} op_sel:[1,1,0] op_sel_hi:[0,1,1] neg_lo:[1,0,0]")
def cm32a(t, x, y): return f"v_pk_mul_f32 {v2(t)}, {v2(x)}, {v2(y)} op_sel:[0,0] op_sel_hi:[1,0]"
def cm32b(d, x, y, t, conj=False): return f"v_pk_fma_f32 {v2(d)}, {v2(x)}, {v2(y)}, {v2(t)} op_sel:[1,1,0] op_sel_hi:[0,1,1] " + ("neg_hi:[1,0,0]" if conj else "neg_lo:[1,0,0]")
def direct(lst, p, sel, t0, d, neg):
    if sel is not None:
        lst.append(f"v_pk_mul_f32 {v2(t0)}, {v2(AR(p))}, s[44:45] op_sel:[0,{sel}] op_sel_hi:[1,{sel}]")
        ar, ai = t0, t0 + 1
    else: ar, ai = AR(p), AI(p)
    lst.append(f"v_exp_f32 v{t0+2}, v{ar}")
    lst.append(f"v_cos_f32 v{t0+4}, v{ai}"); lst.append(f"v_sin_f32 v{t0+5}, v{ai}")
    lst.append(f"v_pk_mul_f32 {v2(d)}, {v2(t0+4)}, {v2(t0+2)} op_sel:[0,0] op_sel_hi:[1,0]" + (" neg_hi:[1,0]" if neg else ""))
W8 = 186; W1 = 188; W2 = 190; W256 = 192
H1, H2, H4, H256 = 194, 195, 196, 197
def head(p):
    a = []; b = []; d = []
    direct(a, p, 0, 10, W8, False)
    direct(b, p, None, 16, W1, True)
    direct(d, p, 1, 244, W256, True)
    s = merge(a, b, d)
    s += [cm32a(16, W1, W1), f"v_cvt_pk_f16_f32 v{H1}, v{W1}, v{W1+1}", cm32b(W2, W1, W1, 16), f"v_cvt_pk_f16_f32 v{H256}, v{W256}, v{W256+1}",
          cm32a(16, W2, W2), f"v_cvt_pk_f16_f32 v{H2}, v{W2}, v{W2+1}", cm32b(W1, W2, W2, 16)]
    return s
def xstream(p):
    s = []
    cur = W8; nxt = [12, 14]
    for k in range(5):
        n = 1 << k
        if k < 4: s.append(cm32a(10, cur, cur))
        s.append(f"v_cvt_pk_f16_f32 v{XR(n)}, v{cur}, v{cur+1}")
        if k < 4:
            d = nxt[k & 1]; s.append(cm32b(d, cur, cur, 10)); cur = d
        cm16(s, [(XR(n + i), XR(i), XR(n)) for i in range(1, n)], (198, 199))
    return s
def ystream(p):
    s = []
    Y = YK
    s.append(f"v_cvt_pk_f16_f32 v{Y(0)}, v{CR(p)}, v{CI(p)}")
    s.append(f"v_cvt_pk_f16_f32 v{H4}, v{W1}, v{W1+1}")
    cm16(s, [(Y(1), Y(0), H1), (Y(2), Y(0), H2), (Y(3), Y(1), H2), (Y(4), Y(0), H4), (Y(5), Y(1), H4), (Y(6), Y(2), H4), (Y(7), Y(3), H4), (Y(260), Y(4), H256),
             (Y(256), Y(0), H256), (Y(516), Y(260), H256), (Y(258), Y(2), H256), (Y(262), Y(6), H256), (Y(772), Y(516), H256)], (238, 239))
    return s
def zstream(p):
    s = []
    zs = [244, 246]; zt = 248
    s.append(cm32a(zt, CR(p), W8)); s.append(cm32b(zs[0], CR(p), W8, zt, conj=True))
    for k in range(8):
        z = zs[k & 1]; n = zs[(k + 1) & 1]
        if k < 7: s.append(cm32a(zt, z, W256))
        s.append(f"v_cvt_pk_f16_f32 v{YK(8+256*k)}, v{z}, v{z+1}")
        if k < 7: s.append(cm32b(n, z, W256, zt))
    return s
def gwrites():
    return [f"ds_write_addtid_b32 v{XK+r} offset:{ROW*r}" for r in range(1, 54)]
def greads():
    s = []
    for k in range(8):
        s.append(f"ds_read_b128 {v4(YF+4*k)}, v{vYr} offset:{32*k}")
        s.append(f"ds_read_b128 {v4(XF+4*k)}, v{vXr} offset:{32*k}")
    return s
def gmfma(p):
    return [f"v_mfma_f32_32x32x16_f16 v[{KA}:{KA+15}], {v4(YF+4*k)}, {v4(XF+4*k)}, " + ("0" if p == 0 and k == 0 else f"v[{KA}:{KA+15}]") for k in range(8)]
def utrans():
    s = ["s_waitcnt vmcnt(0)"]
    for d in range(4):
        r0, r1, r2, r3 = UD + d, UD + 4 + d, UD + 8 + d, UD + 12 + d
        s.append(f"v_perm_b32 v{2+4*(d&1)}, v{r1}, v{r0}, s57")
        s.append(f"v_perm_b32 v{3+4*(d&1)}, v{r3}, v{r2}, s57")
        s.append(f"v_perm_b32 v{4+4*(d&1)}, v{r1}, v{r0}, s58")
        s.append(f"v_perm_b32 v{5+4*(d&1)}, v{r3}, v{r2}, s58")
        if d & 1:
            for k in range(4): s.append(f"ds_write_b64 v{vUW}, {v2(2+2*k)} offset:{UST*(2*(d-1)+k)}")
    s += ["s_mov_b64 exec, 1", f"ds_add_u32 v{vQ}, v{vOne} offset:32", "s_mov_b64 exec, -1"]
    return s

for p in range(3):
    hd = head(p)
    if p == 0: v = merge(hd + xstream(p)[:20], sc) + merge(xstream(p)[20:], ystream(p), zstream(p))
    else:
        v = hd + merge(xstream(p), ystream(p), zstream(p))
        v = v[:12] + merge(v[12:76], gmfma(p - 1)) + v[76:]
    c += v
    if p == 2:
        for r in range(4): e(f"v_mov_b32 v{196+r}, 0")
    c += gwrites()
    c += greads()
    if p == 2:
        e(f"ds_write_b128 v{vZ1}, {v4(196)}")
        e(f"ds_write_b128 v{vZ}, {v4(196)}")
    if p == 0:
        e("s_cmp_lt_u32 s8, 4"); e("s_cbranch_scc1 L_ut0")
        e(";@opt"); uloads((0, 1)); e(";@endopt")
        e("L_ut0:")
        uloads((2, 3))
    if p == 2:
        ut = utrans()
        c += ut[:9] + gmfma(p)[:2] + ut[9:13] + merge(ut[13:21], gmfma(p)[2:5]) + ut[21:] + gmfma(p)[5:]
    stamp()
DLAG = 3
for x in sys.argv:
    if x.startswith("--D="): DLAG = int(x[4:])
AD = lambda m: 4 * m
KS = {}
for i, d in enumerate((2, 3, 4)): KS[("A", d)] = 68 + 8 * i; KS[("B", d)] = 72 + 8 * i
for i, d in enumerate((4, 5, 6, 7)): KS[("C", d)] = 92 + 4 * i
ACC = lambda t: 108 + 4 * (t & 3)
S2 = lambda w, k: 124 + 8 * (w % 3) + 4 * k
S3 = lambda w: 148 + 4 * w
RING = 164; NR = 8; TMP = [196, 240, 244]; TRD = 228
frs = []
for cp in range(8):
    if cp >= 2: frs += [(cp, "a1", 448 + 512 * (cp - 2), cp - 2), (cp, "a2", 432 + 512 * (cp - 2), cp - 2)]
    if cp >= 4: frs += [(cp, "b1", 448 + 512 * (cp - 4), cp - 4), (cp, "b2", 432 + 512 * (cp - 4), cp - 4)]
    for m0 in range(8): frs.append((cp, m0, 448 + 512 * cp - 64 * m0, cp))
fidx = {(a, b): n for n, (a, b, _, _) in enumerate(frs)}
def fread(n): return f"ds_read_b128 {v4(RING + 4 * (n % NR))}, v{vU} offset:{frs[n][2]}"
def poll(name, off, cnt, first=True):
    s = []
    if first: s += [f"ds_read_b32 v{vRT+1}, v{vCN} offset:{off}"]
    s += [f"v_readfirstlane_b32 s12, v{vRT+1}", f"s_cmp_ge_u32 s12, {cnt}", f"s_cbranch_scc1 L_pollE{name}", ";@opt",
          f"L_poll{name}:", "s_sleep 1", f"ds_read_b32 v{vRT+1}, v{vCN} offset:{off}", "s_waitcnt lgkmcnt(0)", f"v_readfirstlane_b32 s12, v{vRT+1}", "s_nop 0", f"s_cmp_lt_u32 s12, {cnt}",
          f"s_cbranch_scc1 L_poll{name}", ";@endopt", f"L_pollE{name}:"]
    return s
a = lambda r: KA + r
F0 = 124
e(f"v_mov_b32 v{F0+14}, s9")
e(f"v_fma_f32 v{a(0)}, v{a(0)}, v{vF}, v{vDv}")
e(f"v_mul_f32 v{a(1)}, v{vF}, v{a(1)}")
for r in range(2, 14, 2): e(f"v_pk_mul_f32 {v2(a(r))}, {v2(a(r))}, {v2(vF-1)} op_sel:[0,1] op_sel_hi:[1,1]")
for j in range(4): e(f"v_cvt_pk_bf16_f32 v{F0+j}, v{a(7-2*j)}, v{a(6-2*j)}")
for j in range(4): e(f"v_cvt_pk_bf16_f32 v{F0+4+j}, v{a(8-2*j)}, v{a(7-2*j)}")
e(f"v_cvt_pk_bf16_f32 v{F0+12}, v{a(0)}, 0")
e(f"v_cvt_pk_bf16_f32 v{F0+10}, 0, v{a(8)}")
e(f"v_cvt_pk_bf16_f32 v{F0+11}, v{a(8)}, v{a(8)}")
e(f"v_cvt_pk_bf16_f32 v{F0+8}, v{a(9)}, v{a(10)}")
e(f"v_cvt_pk_bf16_f32 v{F0+9}, v{a(11)}, v{a(12)}")
e(f"v_cvt_pk_bf16_f32 v{F0+13}, v{a(12)}, v{a(12)}")
e(f"ds_read_b32 v{vRT+1}, v{vCN} offset:32")
e(f"ds_write_b128 v{vDW}, {v4(F0)}")
e(f"ds_write_b128 v{vDW}, {v4(F0+4)} offset:{KO}")
e("s_mov_b64 exec, 1")
e(f"ds_write_b32 v{F0+14}, v{F0+12} offset:{KO + 2*544}")
e("s_mov_b64 exec, -1")
def aread(m):
    off = 16 * (16 - m); base = vKd
    if off >= 128: off -= 128; base = vKd2
    return [f"ds_read2_b32 {v2(AD(m))}, v{base} offset0:{off} offset1:{off+1}", f"ds_read2_b32 {v2(AD(m)+2)}, v{base} offset0:{off+2} offset1:{off+3}"]
for m in (0, 8): c += aread(m)
c += poll("A", 32, 4, first=False)
order = []
for n in range(NR):
    order.append(fread(n))
    if n < 7: order += aread(n + 1) + aread(n + 9)
c += order[:11]
late0 = order[11:]
late1 = ["s_mov_b32 exec_lo, 0", "s_mov_b32 exec_hi, 0x80000000", f"ds_write_b64 v{F0+14}, {v2(F0+10)} offset:{2*28}", f"ds_write_b32 v{F0+14}, v{F0+11} offset:{KO + 2*30}", "s_mov_b64 exec, -1"]
for disp in (0, SO + 2):
    late1 += [f"ds_write_b16 v{vS1}, v{F0+8} offset:{disp+32}", f"ds_write_b16_d16_hi v{vS1}, v{F0+8} offset:{disp}",
              f"ds_write_b16 v{vS2}, v{F0+9} offset:{disp+32}", f"ds_write_b16_d16_hi v{vS2}, v{F0+9} offset:{disp}"]
late1v = [f"v_readlane_b32 s59, v{F0+13}, 31"] + [f"v_and_b32 v{ASP+j}, s59, v{ASP+j}" for j in range(4)]
def sread(key):
    t, d = key
    b0, b1, top = {"A": (0, 128, 4), "B": (256, 384, 4), "C": (512, 672, 7)}[t]
    o0 = b0 // 4 + 8 * (top - d); o1 = b1 // 4 + 8 * (top - d)
    return [f"ds_read2_b32 {v2(KS[key])}, v{vKs} offset0:{o0} offset1:{o0+1}", f"ds_read2_b32 {v2(KS[key]+2)}, v{vKs} offset0:{o1} offset1:{o1+1}"]
lateK = {1: aread(16) + sread(("A", 2)) + sread(("B", 2)), 2: sread(("A", 3)) + sread(("B", 3)), 3: sread(("A", 4)) + sread(("B", 4)) + sread(("C", 4)),
         4: sread(("C", 5)), 5: sread(("C", 6)), 6: sread(("C", 7))}
stamp()
touched = set()
def mf(t, A, B):
    C = v4(ACC(t)) if t in touched else "0"
    touched.add(t)
    return f"v_mfma_f32_16x16x32_bf16 {v4(ACC(t))}, {v4(A)}, {v4(B)}, {C}"
def bx(D, fr, bd): return f"v_mfma_f32_16x16x32_bf16 {v4(D)}, {v4(fr)}, {v4(BND[bd])}, 0"
def outw(t):
    r = YC + 2 * (t & 1)
    return [f"v_cvt_pk_bf16_f32 v{r}, v{ACC(t)}, v{ACC(t)+1}", f"v_cvt_pk_bf16_f32 v{r+1}, v{ACC(t)+2}, v{ACC(t)+3}",
            f"ds_write_b64 v{vYW}, {v2(r)} offset:{512*t}", "s_mov_b64 exec, 1", f"ds_add_u32 v{vCN}, v{vOne} offset:{4*t}", "s_mov_b64 exec, -1"]
def serve(t, guard=True):
    s = []
    if guard: s += ["s_cmp_ge_u32 s8, 4", f"s_cbranch_scc1 L_ns{t}"]
    s += [";@opt", f"L_sv{t}:", f"ds_read_b32 v{vRT}, v{vCN} offset:{4*t}", "s_waitcnt lgkmcnt(0)", f"v_readfirstlane_b32 s12, v{vRT}", "s_nop 0", "s_cmp_ge_u32 s12, 8", f"s_cbranch_scc1 L_go{t}",
          "s_sleep 1", f"s_branch L_sv{t}", f"L_go{t}:",
          f"ds_read_b64_tr_b16 {v2(TRD)}, v{vTR} offset:{512*t}", f"ds_read_b64_tr_b16 {v2(TRD+2)}, v{vTR} offset:{512*t + 4*SWS}",
          f"s_add_u32 s15, s14, {256*t*2560}", "s_waitcnt lgkmcnt(0)", f"buffer_store_dwordx4 {v4(TRD)}, v{vO}, s[40:43], s15 offen", ";@endopt", f"L_ns{t}:"]
    return s
def cvs(S, Tm): return [f"v_cvt_pk_bf16_f32 v{S}, v{S}, v{S+1}", f"v_cvt_pk_bf16_f32 v{S+1}, v{S+2}, v{S+3}", f"v_cvt_pk_bf16_f32 v{S+2}, v{Tm}, v{Tm+1}", f"v_cvt_pk_bf16_f32 v{S+3}, v{Tm+2}, v{Tm+3}"]
polled = []
for cp in range(8):
    ms = []
    F = lambda key: RING + 4 * (fidx[(cp, key)] % NR)
    cv = []
    if cp >= 2:
        w = cp - 2
        ms += [[bx(S2(w, 0), F("a1"), (12,1)), None], [bx(TMP[0], F("a1"), (8,2)), None], [mf(cp, AD(16), F("a1")), fidx[(cp, "a1")]],
               [bx(S2(w, 1), F("a2"), (12,1)), None], [bx(TMP[1], F("a2"), (8,2)), fidx[(cp, "a2")]]]
        cv += cvs(S2(w, 0), TMP[0]) + cvs(S2(w, 1), TMP[1])
    if cp >= 4:
        w = cp - 4
        ms += [[bx(S3(w), F("b1"), (8,3)), None], [mf(cp, ASP, F("b1")), fidx[(cp, "b1")]], [bx(TMP[2], F("b2"), (8,4)), fidx[(cp, "b2")]]]
        cv += cvs(S3(w), TMP[2])
    nhead = len(ms)
    old = []; newer = []
    for d in (4, 3, 2):
        if cp - d >= 0:
            (newer if d == 2 else old).extend([[(cp, S2(cp - d, 0), KS[("A", d)])], [(cp, S2(cp - d, 1), KS[("B", d)])]])
    for d in (7, 6, 5, 4):
        if cp - d >= 0: (newer if d == 4 else old).append([(cp, S3(cp - d), KS[("C", d)])])
    for x in old: ms.append([mf(*x[0]), None])
    dn = []
    for m0 in range(8):
        f = F(m0)
        dn.append([(cp, AD(m0), f), None])
        if cp < 7: dn.append([(cp + 1, AD(8 + m0), f), None])
        dn[-1][1] = fidx[(cp, m0)]
    cut = len(dn) - (1 if cp < 7 else 0)
    for x in dn[:cut]: ms.append([mf(*x[0]), x[1]])
    nd = len(ms)
    for x in newer: ms.append([mf(*x[0]), None])
    for x in dn[cut:]: ms.append([mf(*x[0]), x[1]])
    side = {k: [] for k in range(len(ms))}
    if cp >= 1: side[3] += outw(cp - 1)
    if cp - DLAG >= 0: side[4] += serve(cp - DLAG)
    if cp == 0:
        k = 0
        while late0: side[k] += late0[:5]; late0 = late0[5:]; k += 2
        side[11] += late1; side[13] += late1v[:1]; side[15] += late1v[1:]
    if cp in lateK: side[7] += lateK[cp]
    k = max(nhead + 2, 8)
    for i in range(0, len(cv), 2):
        side[min(k, nd - 2)] += cv[i:i+2]; k += 1
    for k, (txt, rel) in enumerate(ms):
        e(txt)
        if rel is not None and rel + NR < len(frs):
            if frs[rel + NR][3] >= 4 and not polled:
                polled.append(1); c += poll("B", 36, 4)
            e(fread(rel + NR))
        c += side[k]
stamp()
c += outw(7)
e("s_cmp_ge_u32 s8, 4"); e("s_cbranch_scc1 L_fin")
for t in range(8 - DLAG, 8): c += serve(t, guard=False)
e("L_fin:")
if STAMP:
    stamp()
    e("s_waitcnt vmcnt(0)")
    stamp()
    e("s_memrealtime s[98:99]"); e("s_waitcnt lgkmcnt(0)")
    e("s_lshl_b32 s12, s2, 3"); e("s_add_u32 s12, s12, s8"); e("s_lshl_b32 s12, s12, 7")
    e("v_mov_b32 v0, s12")
    for k in (14, 15):
        e(f"v_mov_b32 v2, s{96+2*(k-14)}"); e(f"v_mov_b32 v3, s{97+2*(k-14)}")
        e(f"global_store_dwordx2 v0, v[2:3], s[66:67] offset:{8*k}")
    for k in range(nstamp[0]):
        e(f"v_mov_b32 v2, s{70+2*k}"); e(f"v_mov_b32 v3, s{71+2*k}")
        e(f"global_store_dwordx2 v0, v[2:3], s[66:67] offset:{8*k}")
e("L_end:")

def add_waits(lines):
    out = []; q = []; marks = {}
    issued = 0; done = 0
    dests = []
    opt = False
    for t in lines:
        if t.startswith(";@opt"): opt = True; out.append(t); continue
        if t.startswith(";@endopt"): opt = False; out.append(t); continue
        if opt: out.append(t); continue
        if t.startswith(";@mark"): marks[t.split()[1]] = issued; continue
        if t.startswith(";@wait"):
            k = marks[t.split()[1]]
            if k > done:
                out.append(f"s_waitcnt lgkmcnt({min(15, issued - k)})"); done = max(done, issued - min(15, issued - k))
            continue
        i = Ins(t)
        if i.kind == "label": out.append(t); continue
        if i.op == "s_waitcnt" and "lgkmcnt(0)" in t: done = issued
        needk = 0
        touch = i.r | i.w
        for k in range(done, issued):
            if dests[k] & touch and not (i.kind == "ds" and not (dests[k] & i.r)): needk = k + 1
        if needk > done:
            n = min(15, issued - needk)
            out.append(f"s_waitcnt lgkmcnt({n})"); done = issued - n
        out.append(t)
        if i.kind == "ds": dests.append(i.w); issued += 1
    return out
c = add_waits(c)
body, nn = fix_hazards(c)
body = [l.replace("CODE_END_OFF", "(L_end - %s_kernel - 64)" % NAME) for l in body]
hdr = open("cdna_kernels/" + NAME + ".s.ref").read().split("\n")
hdr = [l for l in hdr if l.startswith(";") and "@launch" not in l]
src = "\n".join(hdr) + f"\n; @launch grid=(160,1,1) block=(512,1,1) lds={LDS}\n"
src += f""".amdgcn_target "amdgcn-amd-amdhsa--gfx950"
.text
.globl {NAME}_kernel
.p2align 8
.type {NAME}_kernel,@function
{NAME}_kernel:
""" + "\n".join(body) + f"""
    s_endpgm
.section .rodata,"a"
.p2align 6
.amdhsa_kernel {NAME}_kernel
  .amdhsa_next_free_vgpr 256
  .amdhsa_next_free_sgpr 102
  .amdhsa_accum_offset 256
  .amdhsa_group_segment_fixed_size 0
  .amdhsa_kernarg_size 152
  .amdhsa_user_sgpr_count 2
  .amdhsa_user_sgpr_kernarg_segment_ptr 1
  .amdhsa_system_sgpr_workgroup_id_x 1
  .amdhsa_ieee_mode 0
.end_amdhsa_kernel
"""
out = [a for a in sys.argv[1:] if not a.startswith("--")]
path = out[0] if out else "cdna_kernels/" + NAME + ".s"
open(path, "w").write(src)
print("wrote", path, "instrs", len(body), "nops inserted", nn)
```
